```python
import torch

def _softmax(x, axis=-1):
    return torch.softmax(x, dim=axis)
def _gelu(x):
    return torch.nn.functional.gelu(x, approximate="tanh")
def _silu(x):
    return torch.nn.functional.silu(x)
def _sigmoid(x):
    return torch.sigmoid(x)
def _layernorm(x, axis=-1, eps=1e-5):
    m = x.mean(dim=axis, keepdim=True)
    v = x.var(dim=axis, keepdim=True, unbiased=False)
    return (x - m) / torch.sqrt(v + eps)
def _scatter_add(tgt, idx, src, axis=0):
    return tgt.clone().index_add_(axis, idx, src)
def _segment_sum(src, seg, n):
    out = torch.zeros((n,) + src.shape[1:], dtype=src.dtype)
    return out.index_add_(0, seg, src)
def _pad(x, pw):
    flat = tuple(v for pair in reversed(pw) for v in pair)
    return torch.nn.functional.pad(x, flat)

kernel_name = 'interleave_layers__sliding_block__mixer_channel_mlp__prompt'

def setup_inputs():

    _w = (lambda a: (lambda t: t.to(torch.bfloat16) if t.is_floating_point() else t)(torch.as_tensor(a)))
    def _A_setup():
        B, S, D = 1, 2048, 640
        return {
            "x": _w((lambda *s: torch.randn(*s, dtype=torch.bfloat16) * 0.05)(B, S, D)),
            "wqkv": _w((lambda *s: torch.randn(*s, dtype=torch.bfloat16) * 0.05)(D, 3 * D)),
            "wo": _w((lambda *s: torch.randn(*s, dtype=torch.bfloat16) * 0.05)(D, D)),
        }
    _A_in = _A_setup()

    def _B_setup():
        B, S, D, F = 1, 2048, 640, 1728
        return {
            "x": _w((lambda *s: torch.randn(*s, dtype=torch.bfloat16) * 0.05)(B, S, D)),
            "w1": _w((lambda *s: torch.randn(*s, dtype=torch.bfloat16) * 1.6)(D, F) * (D ** -0.5)),
            "b1": _w((lambda *s: torch.randn(*s, dtype=torch.bfloat16) * 1.6)(F)),
            "w2": _w((lambda *s: torch.randn(*s, dtype=torch.bfloat16) * 0.4)(F, D) * (F ** -0.5)),
            "b2": _w((lambda *s: torch.randn(*s, dtype=torch.bfloat16) * 0.4)(D)),
        }
    _B_in = _B_setup()

    return {
        "A_x": _A_in["x"],
        "A_wqkv": _A_in["wqkv"],
        "A_wo": _A_in["wo"],
        "B_x": _B_in["x"],
        "B_w1": _B_in["w1"],
        "B_b1": _B_in["b1"],
        "B_w2": _B_in["w2"],
        "B_b2": _B_in["b2"],
    }

def reference(A_x, A_wqkv, A_wo, B_x, B_w1, B_b1, B_w2, B_b2):
    def _A_ref(x, wqkv, wo):
        B, S, D = x.shape
        H = 32; Dh = D // H; W = 256
        qkv = (lambda x, *d: x.permute(*d))((x @ wqkv).reshape(B, S, 3, H, Dh), 2, 0, 3, 1, 4)
        q, k, v = qkv[0], qkv[1], qkv[2]
        scores = torch.einsum("bhqd,bhkd->bhqk", q, k) * (Dh ** -0.5)
        idx = torch.arange(S)
        mask = (idx[:, None] - idx[None, :] >= 0) & (idx[:, None] - idx[None, :] < W)
        scores = torch.where(mask[None, None], scores, -1e9)
        p = _softmax(scores, axis=-1)
        o = torch.einsum("bhqk,bhkd->bhqd", p, v)
        return (lambda x, *d: x.permute(*d))(o, 0, 2, 1, 3).reshape(B, S, D) @ wo

    def _B_ref(x, w1, b1, w2, b2):
        y = _layernorm(x, axis=-1)
        h = _gelu(torch.einsum("bsd,df->bsf", y, w1) + b1)
        return torch.einsum("bsf,fd->bsd", h, w2) + b2

    x = A_x
    x = x + _A_ref(_layernorm(x, axis=-1), A_wqkv, A_wo)
    x = x + _B_ref(_layernorm(x, axis=-1), B_w1, B_b1, B_w2, B_b2)
    x = x + _A_ref(_layernorm(x, axis=-1), A_wqkv, A_wo)
    x = x + _B_ref(_layernorm(x, axis=-1), B_w1, B_b1, B_w2, B_b2)
    return x
```

```python
import re

def v(i, n=1): return "v%d" % i if n == 1 else "v[%d:%d]" % (i, i + n - 1)
def s(i, n=1): return "s%d" % i if n == 1 else "s[%d:%d]" % (i, i + n - 1)

_REG = re.compile(r"^(-|abs\(|neg\()?([vsa])(?:(\d+)|\[(\d+):(\d+)\])\)?$")
def regs_of(op):
    op = op.strip()
    if op in ("vcc",): return {("s", "vcc")}
    if op in ("vcc_lo", "vcc_hi"): return {("s", "vcc")}
    if op == "exec": return {("s", "exec")}
    if op == "m0": return {("s", "m0")}
    m = _REG.match(op)
    if not m: return set()
    k = m.group(2)
    if m.group(3) is not None: return {(k, int(m.group(3)))}
    return {(k, i) for i in range(int(m.group(4)), int(m.group(5)) + 1)}

TRANS = ("v_exp_f32", "v_log_f32", "v_rcp_f32", "v_rsq_f32", "v_sqrt_f32", "v_sin_f32", "v_cos_f32")
class Ins:
    __slots__ = ("text", "op", "kind", "vd", "vs", "sd", "ss", "srcC", "wide_store", "dpp", "lds_dma", "states")
    def __init__(self, text):
        self.text = text
        t = text.split(";")[0].strip()
        parts = t.split(None, 1)
        self.op = op = parts[0]
        rest = parts[1] if len(parts) > 1 else ""
        ops = [x.strip() for x in rest.split(",")] if rest else []
        if ops:
            last = ops[-1].split()
            mods = " ".join(last[1:]); ops[-1] = last[0] if last else ""
            clean = []
            for o in ops:
                o0 = o.split()[0] if o.split() else ""
                clean.append(o0)
            ops = clean
        self.vd = set(); self.vs = set(); self.sd = set(); self.ss = set(); self.srcC = set()
        self.wide_store = False; self.dpp = ("dpp" in op) or ("row_" in t) or ("quad_perm" in t); self.lds_dma = False
        self.states = 1
        def src(o):
            for r in regs_of(o):
                (self.vs if r[0] in "va" else self.ss).add(r)
        def dst(o):
            for r in regs_of(o):
                (self.vd if r[0] in "va" else self.sd).add(r)
        if op == "s_nop":
            self.kind = "nop"; self.states = int(ops[0], 0) + 1
        elif op.startswith("v_mfma"):
            self.kind = "mfma"; dst(ops[0]); src(ops[1]); src(ops[2]); src(ops[3])
            self.srcC = {r for r in regs_of(ops[3]) if r[0] in "va"}
        elif op.startswith("v_cmp"):
            self.kind = "valu"; dst(ops[0]); [src(o) for o in ops[1:]]
        elif op.startswith("v_readfirstlane") or op.startswith("v_readlane"):
            self.kind = "valu"; dst(ops[0]); [src(o) for o in ops[1:]]
        elif op.startswith("v_permlane"):
            self.kind = "valu"; dst(ops[0]); dst(ops[1]); src(ops[0]); src(ops[1])
        elif op.startswith("v_"):
            self.kind = "valu"; dst(ops[0])
            k = 1
            if op.startswith(("v_add_co", "v_addc_co", "v_sub_co", "v_subb_co")):
                dst(ops[1]); k = 2
            [src(o) for o in ops[k:]]
            if op.startswith(("v_fmac", "v_pk_fmac", "v_dot2c", "v_writelane")): src(ops[0])
            if op.startswith("v_cndmask") and len(ops) == 3: self.ss.add(("s", "vcc"))
        elif op.startswith("ds_read") or op.startswith("ds_bpermute") or op.startswith("ds_swizzle"):
            self.kind = "ds"; dst(ops[0]); [src(o) for o in ops[1:]]
        elif op.startswith("ds_"):
            self.kind = "ds"; [src(o) for o in ops]
        elif op.startswith("buffer_load") or op.startswith("global_load"):
            self.kind = "vmem"
            if " lds" in t or "load_lds" in op:
                self.lds_dma = True; [src(o) for o in ops]; self.ss.add(("s", "m0"))
            else:
                dst(ops[0]); [src(o) for o in ops[1:]]
        elif op.startswith("buffer_store") or op.startswith("global_store"):
            self.kind = "vmem"; [src(o) for o in ops]
            self.wide_store = op.endswith("x4") or op.endswith("x3")
        elif op.startswith("buffer_atomic") or op.startswith("global_atomic"):
            self.kind = "vmem"; [src(o) for o in ops]
            if "sc0" in t: dst(ops[0])
        elif op.startswith("buffer_") :
            self.kind = "vmem"
        elif op.startswith("s_"):
            self.kind = "salu"
            if op.startswith(("s_cmp", "s_cbranch", "s_branch", "s_waitcnt", "s_barrier", "s_endpgm", "s_sleep", "s_setprio", "s_bitcmp")):
                [src(o) for o in ops]
            else:
                if ops: dst(ops[0])
                [src(o) for o in ops[1:]]
                if "saveexec" in op: self.sd.add(("s", "exec"))
        else:
            raise ValueError("unknown instr: " + text)
    def store_data(self):
        t = self.text.split(";")[0].strip().split(None, 1)[1]
        ops = [x.strip().split()[0] for x in t.split(",")]
        if self.op.startswith("buffer_store"): return regs_of(ops[0])
        return regs_of(ops[1])

def needed_states(prev, cur):
    n = 0
    pk, ck = prev.kind, cur.kind
    if pk == "valu":
        if ck == "mfma" and (prev.vd & cur.vs): n = max(n, 2)
        if ck == "valu":
            if prev.op in TRANS or prev.op.rstrip("_e32").rstrip("_e64") in TRANS:
                if (prev.vd & cur.vs) and not (cur.op in TRANS): n = max(n, 1)
                if (prev.vd & cur.vs): n = max(n, 1)
            if cur.op.startswith("v_permlane") and (prev.vd & cur.vs): n = max(n, 2)
            if cur.op.startswith(("v_readfirstlane", "v_readlane")) and (prev.vd & cur.vs): n = max(n, 1)
            if cur.dpp and (prev.vd & cur.vs): n = max(n, 2)
            if prev.sd & cur.ss:
                n = max(n, 4 if cur.op.startswith(("v_readlane", "v_writelane")) else 2)
        if ck == "vmem" and (prev.sd & cur.ss): n = max(n, 5)
        if ck == "salu" and (prev.sd & cur.ss): n = max(n, 1)
    if pk == "mfma":
        D = prev.vd
        if ck == "mfma":
            if D & cur.srcC:
                if not (cur.srcC == D): n = max(n, 6)
            ab = cur.vs - cur.srcC
            if D & (cur.vs - cur.srcC): n = max(n, 8)
            if (D & cur.vd) and not (cur.srcC == D and cur.vd == D):
                n = max(n, 6)
        else:
            if D & (cur.vs | cur.vd): n = max(n, 8)
            if ck == "valu" and (prev.srcC & cur.vd): n = max(n, 3)
    if pk == "salu":
        if ("s", "m0") in prev.sd and cur.lds_dma: n = max(n, 1)
    if pk == "vmem" and prev.wide_store and ck == "valu":
        if prev.store_data() & cur.vd: n = max(n, 2)
    return n

def fix_hazards(lines, history=None, window=14):
    out = []
    hist = list(history) if history else []
    for ln in lines:
        t = ln.strip()
        if not t or t.startswith(";") or t.startswith(".") or t.endswith(":"):
            out.append(ln); continue
        cur = Ins(t)
        need = 0; dist = 0
        for p in reversed(hist[-window:]):
            r = needed_states(p, cur)
            if r > dist: need = max(need, r - dist)
            dist += p.states
            if dist >= 12: break
        while need > 0:
            k = min(need, 16)
            nop = Ins("s_nop %d" % (k - 1)); hist.append(nop); out.append("  s_nop %d" % (k - 1)); need -= k
        hist.append(cur); out.append(ln)
    return out, hist

class Asm:
    def __init__(self, name=""):
        self.L = []; self.vm = []; self.lg = []; self.ntok = 0; self.name = name; self.bars = []
    def __call__(self, s_):
        for line in s_.split("\n"):
            line = line.strip()
            if line: self.L.append(line if line.endswith(":") else "  " + line)
    def label(self, n): self.L.append(n + ":")
    def c(self, txt): self.L.append("  ; " + txt)
    def vmem(self, s_):
        self(s_); self.ntok += 1; t = ("v", self.ntok); self.vm.append(t); return t
    def lds(self, s_):
        self(s_); self.ntok += 1; t = ("l", self.ntok); self.lg.append(t); return t
    def wait(self, *toks):
        vmn = None; lgn = None
        flat = []
        for t in toks:
            if t is None: continue
            if isinstance(t, list): flat += t
            else: flat.append(t)
        for t in flat:
            if t[0] == "v":
                if t in self.vm:
                    n = len(self.vm) - 1 - self.vm.index(t); vmn = n if vmn is None else min(vmn, n)
            else:
                if t in self.lg:
                    n = len(self.lg) - 1 - self.lg.index(t); lgn = n if lgn is None else min(lgn, n)
        parts = []
        if vmn is not None:
            vmn = min(vmn, 63)
            parts.append("vmcnt(%d)" % vmn); self.vm = self.vm[len(self.vm) - vmn:] if vmn else []
        if lgn is not None:
            lgn = min(lgn, 15)
            parts.append("lgkmcnt(%d)" % lgn); self.lg = self.lg[len(self.lg) - lgn:] if lgn else []
        if parts: self("s_waitcnt " + " ".join(parts))
    def waitall(self, vm=True, lg=True):
        parts = []
        if vm: parts.append("vmcnt(0)"); self.vm = []
        if lg: parts.append("lgkmcnt(0)"); self.lg = []
        self("s_waitcnt " + " ".join(parts))
    def bar(self, name):
        self.bars.append(name); self.c("BAR " + name); self("s_barrier")
```

```python
import sys
from alib import *

KNAME = "interleave_layers__sliding_block__mixer_channel_mlp__prompt_kernel"
TILE_X = 20 * 1024
TILE_H = 54 * 1024
WS_XF   = [0x0000000, 0x0300000]
WS_X1F  = [0x0600000, 0x0900000]
WS_OF   = [0x0C00000, 0x0F00000]
WS_HF   = [0x1200000, 0x1900000]
WS_KVH  = [0x2000000, 0x2600000]
WS_STX  = [0x2C00000, 0x2C20000]
WS_ST1  = [0x2C40000, 0x2C60000]
WS_FLG  = 0x2D00000
WS_EPOCH = 0x2D10000
WS_STAMP = 0x2E00000
WS_BYTES = 0x10000000
LDS_B1 = 0
LDS_KV = 102400
LDS_Q = 0
LDS_MISC = 159744
LDS_CS1 = LDS_MISC
LDS_CS3 = LDS_MISC + 1024
LDS_ROLE = LDS_MISC + 2816
LDS_TOTAL = 163840
def b3_addr(c): return 102400 + 7168 * c if c < 8 else 7168 * (c - 8)
def b2_addr(pos): return 5120 * pos
def b4_slot_addr(sl): return 86016 + 10240 * sl if sl < 7 else 10240 * (sl - 7)
def b4_addr(step, half): return b4_slot_addr(step % 15) + 5120 * half
P24_SCR_P2 = 28672
P24_SCR_P4 = 102400
A_C = [int(c * 6.75) for c in range(16)]

S_WAVE, S_J, S_M, S_MODE, S_TAG = 3, 4, 5, 6, 7
SRD_WS, SRD_WQKV, SRD_WO, SRD_W1, SRD_W2, SRD_X = 8, 12, 16, 20, 24, 28
P_X, P_B1, P_B2, P_OUT, P_DBG = 32, 34, 36, 38, 40
S_LAYER = 42
S_XIN, S_STIN, S_X1, S_ST1, S_OF, S_HF, S_KVH, S_XOUT, S_STOUT, S_FLG = 43, 44, 45, 46, 47, 48, 49, 50, 51, 52
T0 = 54
MSK = 72
U0 = 84
V_L16, V_LANE, V_TR160, V_TR224 = 255, 254, 253, 252
V_D1, V_D2A, V_D2B, V_D4, V_D3 = 224, 229, 234, 239, 244

EPS = 1e-5
import struct
def f2u(x): return struct.unpack("<I", struct.pack("<f", x))[0]
def hexf(x): return "0x%08x" % f2u(x)

class Gen:
    def __init__(self, stop=None, stamps=False, force_slow=False):
        self.stop = stop; self.stamps = stamps; self.force_slow = force_slow
        self.nlabel = 0
    def lbl(self, p="L"):
        self.nlabel += 1; return "%s_%d" % (p, self.nlabel)

    def srd_set(self, A, srd, ptr, nbytes):
        A(f"s_mov_b32 s{srd}, s{ptr}\ns_and_b32 s{srd+1}, s{ptr+1}, 0xffff\ns_mov_b32 s{srd+2}, {nbytes}\ns_mov_b32 s{srd+3}, 0x20000")

    def xgroup_reduce(self, A, reg, tmp, op):
        A(f"v_mov_b32 v{tmp}, v{reg}")
        A(f"v_permlane16_swap_b32 v{reg}, v{tmp}")
        A(f"{op} v{reg}, v{reg}, v{tmp}")
        A(f"v_mov_b32 v{tmp}, v{reg}")
        A(f"v_permlane32_swap_b32 v{reg}, v{tmp}")
        A(f"{op} v{reg}, v{reg}, v{tmp}")

    def stamp(self, A, idx, wave_cond=None):
        if not self.stamps: return
        A("s_memrealtime s[98:99]")
        A(f"s_lshl_b32 s97, s{S_J}, 5\ns_add_u32 s97, s97, s{S_M}\ns_lshl_b32 s97, s97, 3\ns_add_u32 s97, s97, s{S_WAVE}")
        A(f"s_lshl_b32 s97, s97, 9\ns_mul_i32 s53, s{S_LAYER}, 256\ns_add_u32 s97, s97, s53\ns_add_u32 s97, s97, {WS_STAMP + idx*8}")
        A("s_waitcnt lgkmcnt(0)")
        A.lg = []
        A(f"v_mov_b32 v222, s98\nv_mov_b32 v223, s99\nv_mov_b32 v221, 0")
        A(f"s_mov_b64 s[100:101], exec\ns_mov_b64 exec, 1")
        A.vmem(f"buffer_store_dwordx2 v[222:223], v221, s[{SRD_WS}:{SRD_WS+3}], s97 offen")
        A(f"s_mov_b64 exec, s[100:101]")

    def handoff_stores(self, A, stores, force_sc1=False):
        if force_sc1:
            for st in stores: A.vmem(st + " sc1")
            return
        l1, l2 = self.lbl("HS"), self.lbl("HE")
        A("s_nop 3")
        A(f"s_cmp_lg_u32 s{S_MODE}, 0\ns_cbranch_scc1 {l1}")
        save = list(A.vm)
        for st in stores:
            if st.startswith("s_"): A(st)
            else: A.vmem(st)
        after = list(A.vm)
        A(f"s_branch {l2}")
        A.label(l1)
        for st in stores:
            if st.startswith("s_"): A(st)
            else: A(st + " sc1")
        A.label(l2)
        A("s_nop 1")
        A.vm = after

    def flag_set(self, A, phase_off):
        t = T0
        A(f"s_lshl_b32 s{t}, s{S_J}, 7\ns_lshl_b32 s{t+1}, s{S_M}, 2\ns_add_u32 s{t}, s{t}, s{t+1}\ns_add_u32 s{t}, s{t}, s{S_FLG}\ns_add_u32 s{t}, s{t}, {phase_off}")
        A(f"v_mov_b32 v220, s{S_TAG}\nv_mov_b32 v221, 0")
        A(f"s_mov_b64 s[{t+2}:{t+3}], exec\ns_mov_b64 exec, 1")
        self.handoff_stores(A, [f"buffer_store_dword v220, v221, s[{SRD_WS}:{SRD_WS+3}], s{t} offen"])
        A(f"s_mov_b64 exec, s[{t+2}:{t+3}]")

    def poll(self, A, soff_sgpr, nlanes, errcode):
        lo, done = self.lbl("POLL"), self.lbl("POLLD")
        t = T0 + 4
        A(f"v_lshlrev_b32 v221, 2, v{V_LANE}")
        A(f"s_mov_b32 s{t}, 0")
        mask = (1 << nlanes) - 1
        A(f"s_mov_b64 s[{t+2}:{t+3}], exec")
        A(f"s_mov_b32 exec_lo, 0x{mask & 0xffffffff:x}\ns_mov_b32 exec_hi, 0x{mask >> 32:x}")
        A.label(lo)
        A(f"buffer_load_dword v220, v221, s[{SRD_WS}:{SRD_WS+3}], s{soff_sgpr} offen sc1")
        A("s_waitcnt vmcnt(0)")
        A(f"v_cmp_ne_u32 vcc, s{S_TAG}, v220")
        A(f"s_add_u32 s{t}, s{t}, 1")
        A(f"s_cbranch_vccz {done}")
        A(f"s_cmp_lt_u32 s{t}, 0x200000\ns_cbranch_scc1 {lo}")
        A(f"v_mov_b32 v220, {errcode}\nv_mov_b32 v221, 36")
        self.srd_set(A, SRD_X, P_DBG, 256)
        A(f"s_mov_b64 exec, 1\nbuffer_store_dword v220, v221, s[{SRD_X}:{SRD_X+3}], 0 offen")
        A.label(done)
        A(f"s_mov_b64 exec, s[{t+2}:{t+3}]")
        A.vm = []

    def sync_phase(self, A, set_off, wait_off, err):
        skip = self.lbl("NS")
        A(f"s_cmp_lg_u32 s{S_WAVE}, 0\ns_cbranch_scc1 {skip}")
        if set_off is not None: self.flag_set(A, set_off)
        if wait_off is not None:
            t = T0 + 8
            A(f"s_lshl_b32 s{t}, s{S_J}, 7\ns_add_u32 s{t}, s{t}, s{S_FLG}\ns_add_u32 s{t}, s{t}, {wait_off}")
            self.poll(A, t, 32, err)
        A.label(skip)
        A.vm = []

    def dma_group(self, A, srd, vd, ninstr, c0, c1, lds_of, soff_of, wave_sgpr, nw=4):
        end = self.lbl("DME")
        labs = [self.lbl("DM") for _ in range(nw)]
        for w in range(1, nw):
            A(f"s_cmp_eq_u32 s{wave_sgpr}, {w}\ns_cbranch_scc1 {labs[w]}")
        for w in range(nw):
            A.label(labs[w])
            for c in range(c0 + w, c1, nw):
                const, sg = soff_of(c)
                t = U0
                if sg is None: A(f"s_mov_b32 s{t}, {const}")
                else: A(f"s_add_u32 s{t}, s{sg}, {const}")
                for i in range(ninstr):
                    A(f"s_mov_b32 m0, {lds_of(c) + 1024 * i}")
                    A(f"buffer_load_dwordx4 v{vd + i}, s[{srd}:{srd+3}], s{t} offen lds")
            if w != nw - 1: A(f"s_branch {end}")
        A.label(end)

    def prologue(self, A):
        A(f"s_cmp_ge_u32 s2, 256\ns_cbranch_scc1 L_EXIT")
        A("s_load_dwordx16 s[56:71], s[0:1], 0")
        A("s_load_dwordx4 s[72:75], s[0:1], 64")
        A("s_load_dwordx2 s[76:77], s[0:1], 80")
        A(f"s_getreg_b32 s{S_J}, hwreg(HW_REG_XCC_ID)")
        A(f"v_and_b32 v{V_LANE}, 63, v0\nv_lshrrev_b32 v1, 6, v0\nv_lshlrev_b32 v{V_L16}, 4, v{V_LANE}")
        A(f"v_readfirstlane_b32 s{S_WAVE}, v1")
        A(f"s_and_b32 s{S_J}, s{S_J}, 7")
        A("s_waitcnt lgkmcnt(0)")
        A(f"s_mov_b64 s[{P_X}:{P_X+1}], s[56:57]\ns_mov_b64 s[{P_B1}:{P_B1+1}], s[66:67]\ns_mov_b64 s[{P_B2}:{P_B2+1}], s[70:71]")
        A(f"s_mov_b64 s[{P_OUT}:{P_OUT+1}], s[72:73]\ns_mov_b64 s[{P_DBG}:{P_DBG+1}], s[74:75]")
        self.srd_set(A, SRD_WS, 76, WS_BYTES)
        self.srd_set(A, SRD_WQKV, 58, 640 * 1920 * 2)
        self.srd_set(A, SRD_WO, 60, 640 * 640 * 2)
        self.srd_set(A, SRD_W1, 64, 640 * 1728 * 2)
        self.srd_set(A, SRD_W2, 68, 1728 * 640 * 2)
        A(f"s_mov_b32 s{S_LAYER}, 0")
        after = self.lbl("TK")
        A(f"s_cmp_lg_u32 s{S_WAVE}, 0\ns_cbranch_scc1 {after}")
        self.srd_set(A, SRD_X, P_DBG, 256)
        A(f"s_mov_b64 exec, 1")
        A(f"s_lshl_b32 s{T0}, s{S_J}, 2\nv_mov_b32 v2, s{T0}\nv_mov_b32 v3, 1\nv_mov_b32 v4, 0\ns_mov_b32 s{T0+1}, {WS_EPOCH}")
        A(f"buffer_atomic_add v3, v2, s[{SRD_X}:{SRD_X+3}], 0 offen sc0 sc1")
        A(f"buffer_load_dword v5, v4, s[{SRD_WS}:{SRD_WS+3}], s{T0+1} offen sc1")
        A("s_waitcnt vmcnt(0)")
        A(f"v_readfirstlane_b32 s{S_M}, v3\nv_readfirstlane_b32 s{S_TAG}, v5")
        A(f"s_mul_i32 s{S_TAG}, s{S_TAG}, 0x9E3779B1\ns_add_u32 s{S_TAG}, s{S_TAG}, 0x7F4A7C15")
        A(f"v_mov_b32 v2, 32\nv_mov_b32 v3, 1\nbuffer_atomic_add v3, v2, s[{SRD_X}:{SRD_X+3}], 0 offen sc1")
        ok = self.lbl("TKOK")
        A(f"s_cmp_lt_u32 s{S_M}, 32\ns_cbranch_scc1 {ok}")
        self.read_tickets(A)
        c0 = T0 + 2
        A(f"s_sub_u32 s{U0}, s{S_M}, 32")
        for x in range(8):
            A(f"s_max_u32 s{U0+1}, s{c0+x}, 32\ns_sub_u32 s{U0+1}, s{U0+1}, 32\ns_cmp_gt_u32 s{S_J}, {x}\ns_cselect_b32 s{U0+1}, s{U0+1}, 0\ns_add_u32 s{U0}, s{U0}, s{U0+1}")
        fin = self.lbl("OVF")
        for x in range(8):
            nx = self.lbl("OVN")
            A(f"s_min_u32 s{U0+1}, s{c0+x}, 32\ns_sub_u32 s{U0+2}, 32, s{U0+1}\ns_cmp_lt_u32 s{U0}, s{U0+2}\ns_cbranch_scc0 {nx}")
            A(f"s_mov_b32 s{S_J}, {x}\ns_add_u32 s{S_M}, s{U0+1}, s{U0}\ns_branch {fin}")
            A.label(nx)
            A(f"s_sub_u32 s{U0}, s{U0}, s{U0+2}")
        A(f"s_mov_b32 s{S_J}, 0\ns_mov_b32 s{S_M}, 0")
        A.label(fin)
        A.label(ok)
        A(f"v_mov_b32 v2, {LDS_ROLE}\nv_mov_b32 v4, s{S_J}\nv_mov_b32 v5, s{S_M}\nv_mov_b32 v6, s{S_TAG}\nv_mov_b32 v7, 0")
        A("ds_write_b128 v2, v[4:7]\ns_waitcnt lgkmcnt(0)")
        A("s_mov_b64 exec, -1")
        A.label(after)
        L = V_LANE
        A(f"v_lshrrev_b32 v2, 2, v{L}\nv_and_b32 v3, 3, v{L}\nv_lshlrev_b32 v3, 3, v3")
        A(f"v_mul_u32_u24 v4, 160, v2\nv_add_u32 v{V_TR160}, v4, v3\nv_mul_u32_u24 v4, 224, v2\nv_add_u32 v{V_TR224}, v4, v3")
        for i in range(5):
            A(f"v_add_u32 v2, {64*i}, v{L}\nv_mul_u32_u24 v3, 6554, v2\nv_lshrrev_b32 v3, 16, v3\nv_mul_u32_u24 v4, 10, v3\nv_sub_u32 v4, v2, v4")
            A(f"v_mul_u32_u24 v5, 1280, v3\nv_lshlrev_b32 v6, 4, v4\nv_add_u32 v{V_D4+i}, v5, v6")
            A(f"v_lshrrev_b32 v7, 4, v3\nv_lshlrev_b32 v7, 2, v7\nv_add_u32 v7, v7, v3\nv_mul_u32_u24 v7, 1280, v7\nv_add_u32 v{V_D2A+i}, v7, v6")
            A(f"v_lshrrev_b32 v7, 4, v3\nv_mul_u32_u24 v7, 80, v7\nv_bfe_u32 v8, v3, 2, 2\nv_mul_u32_u24 v8, 20, v8\nv_and_b32 v9, 3, v3\nv_add3_u32 v7, v7, v8, v9\nv_add_u32 v7, 16, v7")
            A(f"v_mul_u32_u24 v7, 1280, v7\nv_add_u32 v{V_D2B+i}, v7, v6")
            A(f"v_mul_u32_u24 v7, 86, v4\nv_lshrrev_b32 v7, 8, v7\nv_mul_u32_u24 v8, 3, v7\nv_sub_u32 v8, v4, v8")
            A(f"v_mul_u32_u24 v7, 1280, v7\nv_lshlrev_b32 v9, 4, v8\nv_lshrrev_b32 v8, 1, v8\nv_lshlrev_b32 v8, 3, v8\nv_sub_u32 v9, v9, v8\nv_add_u32 v7, v7, v9")
            A(f"v_mul_u32_u24 v5, 3840, v3\nv_add_u32 v7, v7, v5\nv_mov_b32 v8, 0x80000000\nv_cmp_eq_u32 vcc, 9, v4\nv_cndmask_b32 v{V_D1+i}, v7, v8, vcc")
        for i in range(7):
            A(f"v_add_u32 v2, {64*i}, v{L}\nv_mul_u32_u24 v3, 4682, v2\nv_lshrrev_b32 v3, 16, v3\nv_mul_u32_u24 v4, 14, v3\nv_sub_u32 v4, v2, v4")
            A(f"v_mul_u32_u24 v5, 3456, v3\nv_lshlrev_b32 v6, 4, v4\nv_add_u32 v{V_D3+i}, v5, v6")
        A.bar("S1")
        A(f"v_mov_b32 v2, {LDS_ROLE}\nds_read_b128 v[4:7], v2\ns_waitcnt lgkmcnt(0)")
        A(f"v_readfirstlane_b32 s{S_J}, v4\nv_readfirstlane_b32 s{S_M}, v5\nv_readfirstlane_b32 s{S_TAG}, v6")
        self.layer_bases(A)

    def read_tickets(self, A):
        lo, done = self.lbl("RT"), self.lbl("RTD")
        c0 = T0 + 2
        A(f"s_mov_b64 s[{U0+4}:{U0+5}], exec\ns_mov_b64 exec, 0xff")
        A(f"v_lshlrev_b32 v40, 2, v{V_LANE}\ns_mov_b32 s{U0+6}, 0")
        A.label(lo)
        A(f"buffer_load_dword v41, v40, s[{SRD_X}:{SRD_X+3}], 0 offen sc1\ns_waitcnt vmcnt(0)")
        for x in range(8): A(f"v_readlane_b32 s{c0+x}, v41, {x}")
        A(f"s_mov_b32 s{U0+7}, 0")
        for x in range(8): A(f"s_add_u32 s{U0+7}, s{U0+7}, s{c0+x}")
        A(f"s_add_u32 s{U0+6}, s{U0+6}, 1")
        A(f"s_cmp_ge_u32 s{U0+7}, 256\ns_cbranch_scc1 {done}")
        A(f"s_cmp_lt_u32 s{U0+6}, 0x200000\ns_cbranch_scc1 {lo}")
        A.label(done)
        A(f"s_mov_b64 exec, s[{U0+4}:{U0+5}]")

    def layer_bases(self, A):
        l = S_LAYER
        def sel(dst, pair): A(f"s_cmp_eq_u32 s{l}, 0\ns_cselect_b32 s{dst}, {pair[0]}, {pair[1]}") if False else None
        A(f"s_cmp_eq_u32 s{l}, 0")
        for dst, pair in [(S_XIN, WS_XF), (S_STIN, WS_STX), (S_X1, WS_X1F), (S_ST1, WS_ST1), (S_OF, WS_OF), (S_HF, WS_HF), (S_KVH, WS_KVH),
                          (S_XOUT, [WS_XF[1], WS_XF[1]]), (S_STOUT, [WS_STX[1], WS_STX[1]]), (S_FLG, [WS_FLG, WS_FLG + 0x2000])]:
            A(f"s_mov_b32 s{U0}, {pair[1]}\ns_cselect_b32 s{dst}, {pair[0]}, s{U0}")

    def kloop(self, A, nsteps, NF, NT, acc, wreg, areg, waddr, abase_sgpr, acur_sgpr, depth, ticks, step0=0):
        tokW, tokA = {}, {}
        def issueW(st, i):
            if st >= nsteps: return
            r = wreg(st % 2, i)
            (b0, o0), (b1, o1) = waddr(st, i)
            tokW[(st, i)] = [A.lds(f"ds_read_b64_tr_b16 {v(r,2)}, v{b0} offset:{o0}"),
                             A.lds(f"ds_read_b64_tr_b16 {v(r+2,2)}, v{b1} offset:{o1}")]
        def issueA(st, t):
            if st >= nsteps: return
            g = st + step0
            if st % 4 == 0 or (st == 0):
                pass
            if (g % 4 == 0) or st == 0:
                A(f"s_add_u32 s{acur_sgpr+t}, s{abase_sgpr+t}, {4096 * (g // 4)}")
            tokA[(st, t)] = A.vmem(f"buffer_load_dwordx4 {v(areg(st % depth, t),4)}, v{V_L16}, s[{SRD_WS}:{SRD_WS+3}], s{acur_sgpr+t} offen offset:{(g % 4) * 1024} sc1")
        for st in range(depth):
            for t in range(NT): issueA(st, t)
        for i in range(NF): issueW(0, i)
        for st in range(nsteps):
            if st in ticks:
                A.bar(ticks[st])
            for i in range(NF):
                for t in range(NT):
                    A.wait(tokW[(st, i)], tokA[(st, t)])
                    A(f"v_mfma_f32_16x16x32_bf16 {v(acc(i,t),4)}, {v(wreg(st%2,i),4)}, {v(areg(st%depth,t),4)}, {v(acc(i,t),4)}")
                    if t == 0: issueW(st + 1, i)
                    if i == NF - 1: issueA(st + depth, t)

    def lds_base_regs(self, A, src, dsts):
        for k, d in enumerate(dsts):
            if k == 0: A(f"v_mov_b32 v{d}, v{src}")
            else: A(f"v_add_u32 v{d}, {65536*k}, v{src}")

    def load_stats(self, A, tile_sgpr, st_sgpr, dst, tmp):
        t = U0 + 1
        A(f"s_lshl_b32 s{t}, s{tile_sgpr}, 10\ns_add_u32 s{t}, s{t}, s{st_sgpr}")
        a = A.vmem(f"buffer_load_dwordx2 {v(dst,2)}, v{tmp}, s[{SRD_WS}:{SRD_WS+3}], s{t} offen sc1")
        b = A.vmem(f"buffer_load_dwordx2 {v(dst+2,2)}, v{tmp}, s[{SRD_WS}:{SRD_WS+3}], s{t} offen offset:128 sc1")
        return [a, b]
    def stats_lane_off(self, A, dst):
        L = V_LANE
        A(f"v_lshrrev_b32 v{dst}, 4, v{L}\nv_lshlrev_b32 v{dst}, 8, v{dst}\nv_and_b32 v220, 15, v{L}\nv_lshlrev_b32 v220, 3, v220\nv_add_u32 v{dst}, v{dst}, v220")
    def finish_stats(self, A, r, mean, rstd, tmp):
        A(f"v_add_f32 v{r}, v{r}, v{r+2}\nv_add_f32 v{r+1}, v{r+1}, v{r+3}")
        self.xgroup_reduce(A, r, tmp, "v_add_f32")
        self.xgroup_reduce(A, r + 1, tmp, "v_add_f32")
        A(f"v_mul_f32 v{mean}, {hexf(1/640)}, v{r}")
        A(f"v_mul_f32 v{r+1}, {hexf(1/640)}, v{r+1}")
        A(f"v_fma_f32 v{r+1}, -v{mean}, v{mean}, v{r+1}")
        A(f"v_max_f32 v{r+1}, 0, v{r+1}")
        A(f"v_add_f32 v{tmp}, {hexf(EPS)}, v{r+1}")
        A(f"v_rsq_f32 v{rstd}, v{tmp}")

    def phase0_C(self, A):
        w = S_WAVE
        L = V_LANE
        A(f"s_lshl_b32 s{T0}, s{S_J}, 4\ns_lshr_b32 s{T0+1}, s{S_M}, 1\ns_add_u32 s{T0}, s{T0}, s{T0+1}")
        A(f"s_and_b32 s{T0+1}, s{S_M}, 1\ns_mul_i32 s{T0+2}, s{T0+1}, 10\ns_add_u32 s{T0+2}, s{T0+2}, s{w}")
        A(f"s_lshl_b32 s{T0+3}, s{T0+1}, 2\ns_add_u32 s{T0+3}, s{T0+3}, s{w}")
        self.srd_set(A, SRD_X, P_X, 2048 * 640 * 2)
        A(f"v_and_b32 v2, 15, v{L}\nv_mul_u32_u24 v2, 1280, v2\nv_lshrrev_b32 v3, 4, v{L}\nv_lshlrev_b32 v3, 3, v3\nv_add_u32 v2, v2, v3")
        A(f"s_mul_i32 s{T0+4}, s{T0}, {16*1280}\ns_lshl_b32 s{T0+5}, s{T0+2}, 6\ns_add_u32 s{T0+4}, s{T0+4}, s{T0+5}")
        for k in range(3):
            if k == 2:
                A(f"s_cmp_lt_u32 s{w}, 2\ns_cselect_b32 s{T0+5}, 512, 0\ns_add_u32 s{T0+5}, s{T0+5}, s{T0+4}")
            else:
                A(f"s_add_u32 s{T0+5}, s{T0+4}, {256*k}")
            A.vmem(f"buffer_load_dwordx2 {v(8+4*k,2)}, v2, s[{SRD_X}:{SRD_X+3}], s{T0+5} offen")
            A.vmem(f"buffer_load_dwordx2 {v(10+4*k,2)}, v2, s[{SRD_X}:{SRD_X+3}], s{T0+5} offen offset:32")
        A(f"s_mov_b32 s{U0+10}, s{T0}\ns_mov_b32 s{U0+11}, s{T0+2}\ns_mov_b32 s{U0+12}, s{T0+3}")
        nm = self.lbl("NM")
        A(f"s_cmp_lg_u32 s{w}, 0\ns_cbranch_scc1 {nm}")
        self.srd_set(A, SRD_X, P_DBG, 256)
        self.read_tickets(A)
        A(f"s_mov_b32 s{S_MODE}, 0")
        for x in range(8):
            A(f"s_cmp_lg_u32 s{T0+2+x}, 32\ns_cselect_b32 s{S_MODE}, 1, s{S_MODE}")
        if self.force_slow: A(f"s_mov_b32 s{S_MODE}, 1")
        A(f"v_mov_b32 v3, {LDS_ROLE+12}\nv_mov_b32 v4, s{S_MODE}\nds_write_b32 v3, v4\ns_waitcnt lgkmcnt(0)")
        A.label(nm)
        A.vm = A.vm
        A.bar("S2")
        self.read_mode(A)
        A.waitall(vm=True, lg=False)
        A(f"v_mov_b32 v20, 0\nv_mov_b32 v21, 0\ns_mov_b32 s{T0}, 0x3f803f80")
        sk = self.lbl("P0S")
        for k in range(3):
            if k == 2: A(f"s_cmp_ge_u32 s{w}, 2\ns_cbranch_scc1 {sk}")
            for d in range(4):
                A(f"v_dot2_f32_bf16 v20, v{8+4*k+d}, s{T0}, v20")
                A(f"v_dot2_f32_bf16 v21, v{8+4*k+d}, v{8+4*k+d}, v21")
        A.label(sk)
        A("s_nop 3")
        self.xgroup_reduce(A, 20, 22, "v_add_f32")
        self.xgroup_reduce(A, 21, 22, "v_add_f32")
        TT, s0, slot = U0 + 10, U0 + 11, U0 + 12
        A(f"s_mul_i32 s{T0}, s{TT}, {TILE_X}\ns_lshl_b32 s{T0+1}, s{s0}, 10\ns_add_u32 s{T0}, s{T0}, s{T0+1}\ns_add_u32 s{T0}, s{T0}, s{S_XIN}")
        A(f"s_add_u32 s{T0+1}, s{T0}, 4096\ns_add_u32 s{T0+2}, s{T0}, 8192")
        A(f"s_lshl_b32 s{T0+3}, s{TT}, 10\ns_lshl_b32 s{T0+4}, s{slot}, 7\ns_add_u32 s{T0+3}, s{T0+3}, s{T0+4}\ns_add_u32 s{T0+3}, s{T0+3}, s{S_STIN}")
        A(f"v_and_b32 v3, 15, v{L}\nv_lshlrev_b32 v3, 3, v3")
        srd = f"s[{SRD_WS}:{SRD_WS+3}]"
        sk2 = self.lbl("P0T")
        st = [f"buffer_store_dwordx4 v[8:11], v{V_L16}, {srd}, s{T0} offen",
              f"buffer_store_dwordx4 v[12:15], v{V_L16}, {srd}, s{T0+1} offen",
              "s_mov_b64 exec, 0xffff",
              f"buffer_store_dwordx2 v[20:21], v3, {srd}, s{T0+3} offen",
              "s_mov_b64 exec, -1"]
        self.handoff_stores(A, st)
        A(f"s_cmp_ge_u32 s{w}, 2\ns_cbranch_scc1 {sk2}")
        self.handoff_stores(A, [f"buffer_store_dwordx4 v[16:19], v{V_L16}, {srd}, s{T0+2} offen"])
        A.label(sk2)
        A.waitall(vm=True, lg=False)
        A.bar("P0done")
        self.sync_phase(A, 0, None, 0)

    def read_mode(self, A):
        A(f"v_mov_b32 v3, {LDS_ROLE+12}\nds_read_b32 v4, v3\ns_waitcnt lgkmcnt(0)\nv_readfirstlane_b32 s{S_MODE}, v4")
        A.lg = []

    def dma_b1(self, A, hwreg):
        A(f"s_mul_i32 s{U0+2}, s{S_M}, 40")
        self.dma_group(A, SRD_WQKV, V_D1, 5, 0, 20, lambda c: LDS_B1 + 5120 * c, lambda c: (c * 32 * 3840, U0 + 2), hwreg)

    def phase0_H(self, A):
        A(f"s_sub_u32 s{T0+16}, s{S_WAVE}, 4")
        self.dma_b1(A, T0 + 16)
        A.bar("S2")
        self.read_mode(A)
        A.bar("P0done")

    def p1_C(self, A):
        w = S_WAVE
        ACC, WB, AB = 0, 64, 96
        acc = lambda i, t: ACC + (i * 4 + t) * 4
        wreg = lambda b, i: WB + (b * 4 + i) * 4
        areg = lambda sl, t: AB + (sl * 4 + t) * 4
        self.sync_phase(A, None, 0, 1)
        A.bar("P1go")
        self.stamp(A, 0)
        ab, ac = T0, T0 + 4
        A(f"s_lshl_b32 s{U0+3}, s{S_J}, 4\ns_lshl_b32 s{U0+4}, s{w}, 2\ns_add_u32 s{U0+3}, s{U0+3}, s{U0+4}")
        for t in range(4):
            A(f"s_add_u32 s{U0+4}, s{U0+3}, {t}\ns_mul_i32 s{ab+t}, s{U0+4}, {TILE_X}\ns_add_u32 s{ab+t}, s{ab+t}, s{S_XIN}")
        self.stats_lane_off(A, 200)
        stt = []
        for t in range(4):
            A(f"s_add_u32 s{U0+4}, s{U0+3}, {t}")
            stt.append(self.load_stats(A, U0 + 4, S_STIN, 160 + 4 * t, 200))
        L = V_LANE
        A(f"v_lshrrev_b32 v201, 2, v{L}\nv_mul_u32_u24 v201, 160, v201\nv_and_b32 v202, 3, v{L}")
        def sel4(dst, vals):
            A(f"v_mov_b32 v{dst}, {vals[0]}")
            for c in range(1, 4):
                A(f"v_cmp_eq_u32 vcc, {c}, v202\nv_mov_b32 v203, {vals[c]}\nv_cndmask_b32 v{dst}, v{dst}, v203, vcc")
            A(f"v_add_u32 v{dst}, v{dst}, v201")
        sel4(204, [40, 96, 104, 112]); sel4(206, [88, 120, 136, 144])
        A(f"v_add_u32 v205, 65536, v204\nv_add_u32 v207, 65536, v206\nv_mov_b32 v208, v{V_TR160}\nv_add_u32 v209, 65536, v{V_TR160}")
        def waddr(st, i):
            base = LDS_B1 + 5120 * st
            res = []
            for h in range(2):
                a = base + h * 16 * 160
                if i == 0: vb, a2 = 208, a
                elif i == 2: vb, a2 = 208, a + 48
                elif i == 1: vb, a2 = 204, a
                else: vb, a2 = 206, a
                res.append((vb + (a2 >> 16), a2 & 0xffff))
            return res
        for r in range(64): A(f"v_mov_b32 v{r}, 0")
        self.kloop(A, 20, 4, 4, acc, wreg, areg, waddr, ab, ac, 4, {})
        for t in range(4):
            A.wait(stt[t])
            self.finish_stats(A, 160 + 4 * t, 176 + t, 180 + t, 203)
        A.bar("P1kend")
        self.stamp(A, 1)
        A(f"v_lshrrev_b32 v200, 4, v{L}\nv_lshlrev_b32 v200, 4, v200\nv_add_u32 v200, {LDS_CS1}, v200")
        toks = []
        for p in range(4):
            for i in range(4):
                toks.append(A.lds(f"ds_read_b128 {v(64 + (p*4+i)*4,4)}, v200 offset:{p*256 + i*64}"))
        A.wait(toks)
        for p in range(1, 4):
            for r in range(0, 16, 2):
                A(f"v_pk_add_f32 {v(64+r,2)}, {v(64+r,2)}, {v(64+p*16+r,2)}")
        QS = (20 ** -0.5) * 1.4426950408889634
        A(f"v_cmp_gt_u32 s[{MSK}:{MSK+1}], 16, v{L}")
        A(f"v_cmp_le_u32 s[{MSK+2}:{MSK+3}], 48, v{L}")
        for t in range(4):
            A(f"v_mul_f32 v{184+t}, {hexf(QS)}, v{180+t}")
            A(f"v_cndmask_b32 v{188+t}, v{180+t}, v{184+t}, s[{MSK}:{MSK+1}]")
        for t in range(4):
            for i in range(4):
                sc = {0: 184 + t, 1: 188 + t, 2: 180 + t, 3: 180 + t}[i]
                a = acc(i, t)
                for r in range(0, 4, 2):
                    A(f"v_pk_fma_f32 {v(a+r,2)}, {v(64+i*4+r,2)}, {v(176+t - (176+t)%2,2)}, {v(a+r,2)} op_sel:[0,{(176+t)%2},0] op_sel_hi:[1,{(176+t)%2},1] neg_lo:[0,1,0] neg_hi:[0,1,0]")
                for r in range(0, 4, 2):
                    A(f"v_pk_mul_f32 {v(a+r,2)}, {v(a+r,2)}, {v(sc - sc%2,2)} op_sel:[0,{sc%2}] op_sel_hi:[1,{sc%2}]")
                d = 96 + 8 * t + (i // 2) * 4 + (i % 2) * 2
                A(f"v_cvt_pk_bf16_f32 v{d}, v{a}, v{a+1}\nv_cvt_pk_bf16_f32 v{d+1}, v{a+2}, v{a+3}")
            d = 96 + 8 * t + 4
            A(f"v_mov_b32 v203, 0x3f80\nv_cndmask_b32 v{d+2}, v{d+2}, v203, s[{MSK+2}:{MSK+3}]")
            A(f"v_mov_b32 v203, 0\nv_cndmask_b32 v{d+3}, v{d+3}, v203, s[{MSK+2}:{MSK+3}]")
        A(f"s_lshl_b32 s{U0+4}, s{w}, 2\ns_add_u32 s{U0+5}, s{U0+4}, 16\ns_mul_i32 s{U0+5}, s{U0+5}, 1536\ns_add_u32 s{U0+5}, s{U0+5}, {LDS_KV}")
        A(f"v_add_u32 v200, s{U0+5}, v{V_L16}")
        A(f"v_lshlrev_b32 v201, 3, v{L}\nv_add_u32 v201, s{U0+5}, v201")
        A(f"s_lshl_b32 s{U0+4}, s{U0+4}, 10\nv_add_u32 v202, s{U0+4}, v{V_L16}")
        A(f"s_lshl_b32 s{U0+6}, s{S_J}, 5\ns_add_u32 s{U0+6}, s{U0+6}, s{S_M}\ns_mul_i32 s{U0+6}, s{U0+6}, 24576\ns_add_u32 s{U0+6}, s{U0+6}, s{S_KVH}")
        A(f"s_mul_i32 s{U0+7}, s{w}, {4*1536}\ns_add_u32 s{U0+6}, s{U0+6}, s{U0+7}")
        A(f"v_lshlrev_b32 v203, 3, v{L}")
        srd = f"s[{SRD_WS}:{SRD_WS+3}]"
        for t in range(4):
            d = 96 + 8 * t
            A(f"s_add_u32 s{U0+7}, s{U0+6}, {1536*t}")
            A.vmem(f"buffer_store_dwordx4 {v(d+4,4)}, v{V_L16}, {srd}, s{U0+7} offen sc1")
            A.vmem(f"buffer_store_dwordx2 {v(d+2,2)}, v203, {srd}, s{U0+7} offen offset:1024 sc1")
            A.lds(f"ds_write_b128 v200, {v(d+4,4)} offset:{1536*t}")
            A.lds(f"ds_write_b64 v201, {v(d+2,2)} offset:{1536*t+1024}")
        for t in range(4):
            d = 96 + 8 * t
            A(f"v_mov_b32 v{192+2*t}, v{d+2}\nv_mov_b32 v{193+2*t}, v{d+3}") if False else None
        A.wait(*A.lg)
        A("s_nop 1")
        for t in range(4):
            d = 96 + 8 * t
            A(f"v_mov_b32 v{0+4*t}, v{d}\nv_mov_b32 v{1+4*t}, v{d+1}")
            A(f"v_cndmask_b32 v{2+4*t}, 0, v{d+2}, s[{MSK}:{MSK+1}]\nv_cndmask_b32 v{3+4*t}, 0, v{d+3}, s[{MSK}:{MSK+1}]")
            A.lds(f"ds_write_b128 v202, {v(4*t,4)} offset:{LDS_Q + 1024*t}")
        A.waitall()
        A.bar("P1epi")
        self.stamp(A, 2)
        sk = self.lbl("HF")
        A(f"s_cmp_lg_u32 s{w}, 0\ns_cbranch_scc1 {sk}")
        t = T0
        A(f"s_lshl_b32 s{t}, s{S_J}, 7\ns_lshl_b32 s{t+1}, s{S_M}, 2\ns_add_u32 s{t}, s{t}, s{t+1}\ns_add_u32 s{t}, s{t}, s{S_FLG}\ns_add_u32 s{t}, s{t}, 0x1000")
        A(f"v_mov_b32 v220, s{S_TAG}\nv_mov_b32 v221, 0\ns_mov_b64 exec, 1")
        A(f"buffer_store_dword v220, v221, {srd}, s{t} offen sc1")
        A("s_mov_b64 exec, -1")
        A.label(sk)

    def p1_H(self, A):
        hw = T0 + 16
        A(f"s_sub_u32 s{hw}, s{S_WAVE}, 4")
        A.waitall(vm=True, lg=False)
        A.bar("P1go")
        L = V_LANE
        A(f"v_lshrrev_b32 v201, 2, v{L}\nv_mul_u32_u24 v201, 160, v201\nv_and_b32 v202, 3, v{L}")
        def sel4(dst, vals):
            A(f"v_mov_b32 v{dst}, {vals[0]}")
            for c in range(1, 4):
                A(f"v_cmp_eq_u32 vcc, {c}, v202\nv_mov_b32 v203, {vals[c]}\nv_cndmask_b32 v{dst}, v{dst}, v203, vcc")
            A(f"v_add_u32 v{dst}, v{dst}, v201")
        sel4(204, [40, 96, 104, 112]); sel4(206, [88, 120, 136, 144])
        A(f"v_mov_b32 v208, v{V_TR160}")
        A(f"s_mul_i32 s{U0}, s{hw}, 5120\nv_add_u32 v204, s{U0}, v204\nv_add_u32 v206, s{U0}, v206\nv_add_u32 v208, s{U0}, v208")
        A(f"v_add_u32 v205, 65536, v204\nv_add_u32 v207, 65536, v206\nv_add_u32 v209, 65536, v208")
        for r in range(4): A(f"v_mov_b32 v{16+r}, 0x3f803f80")
        for r in range(16): A(f"v_mov_b32 v{r}, 0")
        for n in range(5):
            base = LDS_B1 + 5120 * 4 * n
            toks = []
            for i in range(4):
                tk = []
                for h in range(2):
                    a = base + h * 16 * 160
                    vb, a2 = {0: (208, a), 2: (208, a + 48), 1: (204, a), 3: (206, a)}[i]
                    tk.append(A.lds(f"ds_read_b64_tr_b16 {v(32+i*4+2*h,2)}, v{vb + (a2 >> 16)} offset:{a2 & 0xffff}"))
                toks.append(tk)
            for i in range(4):
                A.wait(toks[i])
                A(f"v_mfma_f32_16x16x32_bf16 {v(i*4,4)}, {v(32+i*4,4)}, v[16:19], {v(i*4,4)}")
        A(f"v_lshrrev_b32 v200, 4, v{L}\nv_lshlrev_b32 v200, 4, v200\ns_lshl_b32 s{U0}, s{hw}, 8\ns_add_u32 s{U0}, s{U0}, {LDS_CS1}\nv_add_u32 v200, s{U0}, v200")
        A(f"v_and_b32 v201, 15, v{L}\nv_cmp_eq_u32 vcc, 0, v201\ns_and_saveexec_b64 s[{U0+2}:{U0+3}], vcc")
        for i in range(4):
            A.lds(f"ds_write_b128 v200, {v(i*4,4)} offset:{i*64}")
        A(f"s_mov_b64 exec, s[{U0+2}:{U0+3}]")
        A.waitall(vm=False)
        A.bar("P1kend")
        A.bar("P1epi")

    def b2_dma_chunk(self, A, pos_sgpr):
        t = U0
        lb, le = self.lbl("B2B"), self.lbl("B2E")
        A(f"s_and_b32 s{t}, s{pos_sgpr}, 1\ns_mul_i32 s{t}, s{t}, 10\ns_lshr_b32 s{t+1}, s{pos_sgpr}, 1\ns_add_u32 s{t}, s{t}, s{t+1}")
        A(f"s_mul_i32 s{t+1}, s{pos_sgpr}, 5120")
        A(f"s_and_b32 s{t+2}, s{S_M}, 7\ns_mul_i32 s{t+2}, s{t+2}, 160")
        A(f"s_cmp_ge_u32 s{t}, 16\ns_cbranch_scc1 {lb}")
        A(f"s_mul_i32 s{t}, s{t}, {40*1280}\ns_add_u32 s{t}, s{t}, s{t+2}")
        for i in range(5):
            A(f"s_add_u32 m0, s{t+1}, {1024*i}")
            A(f"buffer_load_dwordx4 v{V_D2A+i}, s[{SRD_WO}:{SRD_WO+3}], s{t} offen lds")
        A(f"s_branch {le}")
        A.label(lb)
        A(f"s_sub_u32 s{t}, s{t}, 16\ns_mul_i32 s{t}, s{t}, {160*1280}\ns_add_u32 s{t}, s{t}, s{t+2}")
        for i in range(5):
            A(f"s_add_u32 m0, s{t+1}, {1024*i}")
            A(f"buffer_load_dwordx4 v{V_D2B+i}, s[{SRD_WO}:{SRD_WO+3}], s{t} offen lds")
        A.label(le)

    def attention(self, A):
        w = S_WAVE; L = V_LANE
        VQ, VNM, VO, VS, VP, VK, VV = 0, 8, 16, 32, 48, 56, 72
        VKA, VV0, VV1, MX, TMP = 90, 91, 92, 94, 96
        S_QB, S_CNT, S_THR, S_POS = T0 + 10, T0 + 11, T0 + 12, T0 + 13
        NEG = 0xF149F2CA
        A(f"s_sub_u32 s{S_QB}, 11, s{w}\ns_cmp_lt_u32 s{w}, 4\ns_cselect_b32 s{S_QB}, s{w}, s{S_QB}")
        A(f"s_mov_b32 s{S_THR}, {hexf(8.0)}")
        A(f"v_lshrrev_b32 v100, 4, v{L}\nv_lshlrev_b32 v100, 2, v100\nv_and_b32 v101, 15, v{L}")
        for i in range(4):
            A(f"v_add_u32 v102, {i}, v100\nv_cmp_le_u32 s[{MSK+4+2*i}:{MSK+5+2*i}], v102, v101")
        A(f"s_lshl_b32 s{U0}, s{S_QB}, 11\nv_add_u32 v100, s{U0}, v{V_L16}")
        tq = [A.lds(f"ds_read_b128 {v(VQ,4)}, v100 offset:{LDS_Q}"), A.lds(f"ds_read_b128 {v(VQ+4,4)}, v100 offset:{LDS_Q+1024}")]
        A(f"v_lshrrev_b32 v100, 2, v{L}\nv_and_b32 v101, 3, v{L}")
        A(f"v_add_u32 v102, 1, v101\nv_lshlrev_b32 v102, 4, v102\nv_add_u32 v102, v102, v100\nv_lshlrev_b32 v102, 3, v102\nv_add_u32 v102, 1024, v102")
        A(f"v_add_u32 v103, 16, v100\nv_lshlrev_b32 v103, 4, v103\nv_add_u32 v103, 8, v103")
        A(f"v_cmp_eq_u32 vcc, 3, v101\nv_cndmask_b32 v104, v102, v103, vcc")
        A(f"v_add_u32 v102, 32, v100\nv_lshlrev_b32 v102, 4, v102\nv_add_u32 v102, 8, v102\nv_add_u32 v103, 256, v102")
        A(f"v_cmp_eq_u32 vcc, 0, v101\nv_cndmask_b32 v105, v103, v102, vcc")
        def set_block(sreg_block):
            A(f"s_mul_i32 s{U0}, s{sreg_block}, 3072\ns_add_u32 s{U0}, s{U0}, {LDS_KV}")
            A(f"v_add_u32 v{VKA}, s{U0}, v{V_L16}\nv_add_u32 v{VV0}, s{U0}, v104\nv_add_u32 v{VV1}, s{U0}, v105")
        nb = self.lbl("NB")
        A(f"s_cmp_eq_u32 s{w}, 0\ns_cbranch_scc1 {nb}")
        A(f"s_add_u32 s{S_POS}, s{w}, 4")
        self.b2_dma_chunk(A, S_POS)
        A.label(nb)
        nh = self.lbl("NH")
        A(f"s_cmp_lg_u32 s{w}, 0\ns_cbranch_scc1 {nh}\ns_cmp_eq_u32 s{S_J}, 0\ns_cbranch_scc1 {nh}")

        def rd_kv(B):
            tk = [B.lds(f"ds_read_b128 {v(VK,4)}, v{VKA}"), B.lds(f"ds_read_b128 {v(VK+4,4)}, v{VKA} offset:1536")]
            tv = [B.lds(f"ds_read_b64_tr_b16 {v(VV,2)}, v{VV0}"), B.lds(f"ds_read_b64_tr_b16 {v(VV+2,2)}, v{VV0} offset:1536"),
                  B.lds(f"ds_read_b64_tr_b16 {v(VV+4,2)}, v{VV1}"), B.lds(f"ds_read_b64_tr_b16 {v(VV+6,2)}, v{VV1} offset:1536")]
            return tk, tv
        S_ = lambda a, b: VS + (a * 2 + b) * 4
        O_ = lambda dt, b: VO + (dt * 2 + b) * 4
        def blockmax(B):
            for b in range(2):
                a0, a1 = S_(0, b), S_(1, b)
                B(f"v_max3_f32 v{MX+b}, v{a0}, v{a0+1}, v{a0+2}\nv_max3_f32 v{MX+b}, v{MX+b}, v{a0+3}, v{a1}\nv_max3_f32 v{MX+b}, v{MX+b}, v{a1+1}, v{a1+2}\nv_max_f32 v{MX+b}, v{MX+b}, v{a1+3}")
        def exp_pv(B, tv, first):
            for b in range(2):
                for a in range(2):
                    for r in range(4): B(f"v_exp_f32 v{S_(a,b)+r}, v{S_(a,b)+r}")
                for a in range(2):
                    B(f"v_cvt_pk_bf16_f32 v{VP+4*b+2*a}, v{S_(a,b)}, v{S_(a,b)+1}\nv_cvt_pk_bf16_f32 v{VP+4*b+2*a+1}, v{S_(a,b)+2}, v{S_(a,b)+3}")
            B.wait(tv)
            for b in range(2):
                for dt in range(2):
                    c = "0" if first else v(O_(dt, b), 4)
                    B(f"v_mfma_f32_16x16x32_bf16 {v(O_(dt,b),4)}, {v(VV+4*dt,4)}, {v(VP+4*b,4)}, {c}")
        def rare_path(B, lab, back):
            B.label(lab)
            B("s_nop 7")
            for b in range(2):
                self.xgroup_reduce(B, MX + b, TMP, "v_max_f32")
                B(f"v_max_f32 v{MX+b}, 0, v{MX+b}")
                for a in range(2):
                    for r in range(4): B(f"v_sub_f32 v{S_(a,b)+r}, v{S_(a,b)+r}, v{MX+b}")
                for r in range(4): B(f"v_sub_f32 v{VNM+4*b+r}, v{VNM+4*b+r}, v{MX+b}")
                B(f"v_sub_f32 v{TMP}, 0, v{MX+b}\nv_exp_f32 v{TMP}, v{TMP}\ns_nop 1")
                for dt in range(2):
                    for r in range(4): B(f"v_mul_f32 v{O_(dt,b)+r}, v{O_(dt,b)+r}, v{TMP}")
            B(f"s_nop 7\ns_branch {back}")
        def body(B, kind, rare, back):
            tk, tv = rd_kv(B)
            B.wait(tk)
            if kind == "full":
                for b in range(2):
                    for a in range(2):
                        B(f"v_mfma_f32_16x16x32_bf16 {v(S_(a,b),4)}, {v(VK+4*a,4)}, {v(VQ+4*b,4)}, {v(VNM+4*b,4)}")
            else:
                for (a, b) in [(0, 0), (1, 0), (1, 1)]:
                    B(f"v_mfma_f32_16x16x32_bf16 {v(S_(a,b),4)}, {v(VK+4*a,4)}, {v(VQ+4*b,4)}, {v(VNM+4*b,4)}")
                B(f"v_mov_b32 v{TMP}, 0x{NEG:x}")
                for r in range(4): B(f"v_mov_b32 v{S_(0,1)+r}, v{TMP}")
                for (a, b) in [(0, 0), (1, 1)]:
                    for r in range(4):
                        B(f"v_cndmask_b32 v{S_(a,b)+r}, v{S_(a,b)+r}, v{TMP}, s[{MSK+4+2*r}:{MSK+5+2*r}]")
            blockmax(B)
            B(f"v_max_f32 v{TMP}, v{MX}, v{MX+1}\nv_cmp_lt_f32 vcc, s{S_THR}, v{TMP}\ns_cbranch_vccnz {rare}")
            B.label(back)
            exp_pv(B, tv, False)

        t = T0 + 14
        A(f"s_sub_u32 s{t}, s{S_J}, 1\ns_lshl_b32 s{t+1}, s{t}, 7\ns_lshl_b32 s{U0}, s{S_M}, 2\ns_add_u32 s{t+1}, s{t+1}, s{U0}\ns_add_u32 s{t+1}, s{t+1}, s{S_FLG}\ns_add_u32 s{t+1}, s{t+1}, 0x1000")
        self.poll(A, t + 1, 1, 100)
        A(f"s_lshl_b32 s{t}, s{t}, 5\ns_add_u32 s{t}, s{t}, s{S_M}\ns_mul_i32 s{t}, s{t}, 24576\ns_add_u32 s{t}, s{t}, s{S_KVH}")
        for i in range(24):
            if i % 4 == 0 and i > 0: A(f"s_add_u32 s{t}, s{t}, 4096")
            A(f"s_mov_b32 m0, {LDS_KV + 1024*i}")
            A(f"buffer_load_dwordx4 v{V_L16}, s[{SRD_WS}:{SRD_WS+3}], s{t} offen sc1 lds") if False else None
            A(f"s_add_u32 s{U0}, s{t}, {(i%4)*1024}")
            A(f"buffer_load_dwordx4 v{V_L16}, s[{SRD_WS}:{SRD_WS+3}], s{U0} offen sc1 lds")
        A.label(nh)
        nb2 = self.lbl("NB")
        A(f"s_cmp_lg_u32 s{w}, 0\ns_cbranch_scc1 {nb2}")
        A(f"s_mov_b32 s{S_POS}, 4")
        self.b2_dma_chunk(A, S_POS)
        A.label(nb2)

        A(f"s_add_u32 s{S_CNT}, s{S_QB}, 8")
        set_block(S_CNT)
        tk, tv = rd_kv(A)
        A.wait(tq, tk)
        for (a, b) in [(0, 0), (0, 1), (1, 1)]:
            A(f"v_mfma_f32_16x16x32_bf16 {v(S_(a,b),4)}, {v(VK+4*a,4)}, {v(VQ+4*b,4)}, 0")
        A(f"v_mov_b32 v{TMP}, 0x{NEG:x}")
        for r in range(4): A(f"v_mov_b32 v{S_(1,0)+r}, v{TMP}")
        for (a, b) in [(0, 0), (1, 1)]:
            for r in range(4):
                A(f"v_cndmask_b32 v{S_(a,b)+r}, v{TMP}, v{S_(a,b)+r}, s[{MSK+4+2*r}:{MSK+5+2*r}]")
        blockmax(A)
        for b in range(2):
            self.xgroup_reduce(A, MX + b, TMP, "v_max_f32")
            for a in range(2):
                for r in range(4): A(f"v_sub_f32 v{S_(a,b)+r}, v{S_(a,b)+r}, v{MX+b}")
            for r in range(4): A(f"v_sub_f32 v{VNM+4*b+r}, 0, v{MX+b}")
        exp_pv(A, tv, True)
        A(f"s_add_u32 s{S_POS}, s{w}, 12")
        self.b2_dma_chunk(A, S_POS)

        def full_loop(first_block_sgpr_expr, count_sgpr):
            lo, en, rare, back = self.lbl("AL"), self.lbl("AE"), self.lbl("AR"), self.lbl("AB")
            A(f"s_cmp_eq_u32 s{count_sgpr}, 0\ns_cbranch_scc1 {en}")
            B = Asm()
            B.label(lo)
            body(B, "full", rare, back)
            B(f"v_add_u32 v{VKA}, 3072, v{VKA}\nv_add_u32 v{VV0}, 3072, v{VV0}\nv_add_u32 v{VV1}, 3072, v{VV1}")
            B(f"s_sub_u32 s{count_sgpr}, s{count_sgpr}, 1\ns_cmp_lg_u32 s{count_sgpr}, 0\ns_cbranch_scc1 {lo}")
            f1, h = fix_hazards(B.L)
            f2, _ = fix_hazards(B.L, history=h)
            A("s_nop 7")
            A.L += f2
            A(f"s_branch {en}")
            R = Asm(); rare_path(R, rare, back); A.L += R.L
            A.label(en)
            A("s_nop 7")
        A(f"s_mov_b32 s{S_CNT}, 8")
        set_block(S_CNT)
        A(f"s_mov_b32 s{S_CNT}, s{S_QB}")
        full_loop(None, S_CNT)
        A.waitall(vm=False)
        nw = self.lbl("NW")
        A(f"s_cmp_lg_u32 s{w}, 0\ns_cbranch_scc1 {nw}\ns_waitcnt vmcnt(10)")
        A.label(nw)
        A.bar("ATTmid")
        np_ = self.lbl("NP")
        A(f"s_cmp_lt_u32 s{w}, 4\ns_cbranch_scc1 {np_}\ns_sub_u32 s{S_POS}, s{w}, 4")
        self.b2_dma_chunk(A, S_POS)
        A.label(np_)
        fin = self.lbl("AF")
        A(f"s_cmp_eq_u32 s{S_J}, 0\ns_cbranch_scc1 {fin}")
        A(f"s_add_u32 s{S_CNT}, s{S_QB}, 1")
        set_block(S_CNT)
        A(f"s_sub_u32 s{S_CNT}, 7, s{S_QB}")
        full_loop(None, S_CNT)
        A(f"s_mov_b32 s{S_CNT}, s{S_QB}")
        set_block(S_CNT)
        rare, back, af2 = self.lbl("AR"), self.lbl("AB"), self.lbl("AG")
        body(A, "far", rare, back)
        A(f"s_branch {af2}")
        R = Asm(); rare_path(R, rare, back); A.L += R.L
        A.label(af2)
        A.label(fin)
        A("s_nop 7")
        A(f"s_lshl_b32 s{U0}, s{S_J}, 4\ns_lshl_b32 s{U0+1}, s{S_QB}, 1\ns_add_u32 s{U0}, s{U0}, s{U0+1}\ns_mul_i32 s{U0}, s{U0}, {TILE_X}\ns_add_u32 s{U0}, s{U0}, s{S_OF}")
        h = S_M
        A(f"s_lshr_b32 s{U0+1}, s{h}, 1\ns_lshl_b32 s{U0+1}, s{U0+1}, 10\ns_and_b32 s{U0+2}, s{h}, 1\ns_lshl_b32 s{U0+2}, s{U0+2}, 3\ns_add_u32 s{U0+1}, s{U0+1}, s{U0+2}\ns_add_u32 s{U0+1}, s{U0+1}, s{U0}")
        A(f"s_lshr_b32 s{U0+2}, s{h}, 3\ns_add_u32 s{U0+2}, s{U0+2}, 16\ns_lshl_b32 s{U0+2}, s{U0+2}, 10\ns_and_b32 s{U0+3}, s{h}, 3\ns_lshl_b32 s{U0+3}, s{U0+3}, 8\ns_add_u32 s{U0+2}, s{U0+2}, s{U0+3}")
        A(f"s_bfe_u32 s{U0+3}, s{h}, 0x10002\ns_lshl_b32 s{U0+3}, s{U0+3}, 3\ns_add_u32 s{U0+2}, s{U0+2}, s{U0+3}\ns_add_u32 s{U0+2}, s{U0+2}, s{U0}")
        A(f"s_add_u32 s{U0+3}, s{U0+1}, {TILE_X}\ns_add_u32 s{U0+4}, s{U0+2}, {TILE_X}")
        for b in range(2):
            l0, l1 = 100, 101
            A(f"v_mov_b32 v{l0}, v{O_(1,b)}\nv_mov_b32 v{l1}, v{O_(1,b)}")
            A(f"v_permlane16_swap_b32 v{l0}, v{l1}")
            A(f"v_rcp_f32 v{l1}, v{l1}")
            for dt in range(2):
                for r in range(4): A(f"v_mul_f32 v{O_(dt,b)+r}, v{O_(dt,b)+r}, v{l1}")
            for dt in range(2):
                d = 104 + 4 * b + 2 * dt
                A(f"v_cvt_pk_bf16_f32 v{d}, v{O_(dt,b)}, v{O_(dt,b)+1}\nv_cvt_pk_bf16_f32 v{d+1}, v{O_(dt,b)+2}, v{O_(dt,b)+3}")
        srd = f"s[{SRD_WS}:{SRD_WS+3}]"
        st = [f"buffer_store_dwordx2 v[104:105], v{V_L16}, {srd}, s{U0+1} offen",
              f"buffer_store_dwordx2 v[108:109], v{V_L16}, {srd}, s{U0+3} offen",
              "s_mov_b64 exec, 0xffff",
              f"buffer_store_dwordx2 v[106:107], v{V_L16}, {srd}, s{U0+2} offen",
              f"buffer_store_dwordx2 v[110:111], v{V_L16}, {srd}, s{U0+4} offen",
              "s_mov_b64 exec, -1"]
        self.handoff_stores(A, st)
        A.waitall()
        A.bar("ATTdone")

    def p24_C(self, A, which):
        w = S_WAVE; L = V_LANE
        is4 = which == 4
        nsteps = 27 if is4 else 10
        tile_bytes = TILE_H if is4 else TILE_X
        S_A = S_HF if is4 else S_OF
        ACC, WB, AB = 0, 40, 80
        acc = lambda i, t: ACC + (i * 2 + t) * 4
        wreg = lambda b, i: WB + (b * 5 + i) * 4
        depth = 6
        areg = lambda sl, t: AB + (sl * 2 + t) * 4
        name = "P%d" % which
        self.sync_phase(A, 0x400 if not is4 else 0xC00, 0x400 if not is4 else 0xC00, 10 + which)
        A.bar(name + "go")
        self.stamp(A, 4 if not is4 else 10)
        TB = U0 + 10
        A(f"s_lshl_b32 s{TB}, s{S_J}, 4\ns_lshr_b32 s{U0+3}, s{S_M}, 3\ns_lshl_b32 s{U0+3}, s{U0+3}, 2\ns_add_u32 s{TB}, s{TB}, s{U0+3}")
        A(f"s_and_b32 s{U0+3}, s{w}, 1\ns_lshl_b32 s{U0+3}, s{U0+3}, 1\ns_add_u32 s{U0+3}, s{U0+3}, s{TB}")
        A(f"s_lshr_b32 s{U0+4}, s{w}, 1")
        ab, ac = T0, T0 + 4
        for t in range(2):
            A(f"s_add_u32 s{U0+5}, s{U0+3}, {t}\ns_mul_i32 s{ab+t}, s{U0+5}, {tile_bytes}\ns_add_u32 s{ab+t}, s{ab+t}, s{S_A}")
            A(f"s_mul_i32 s{U0+5}, s{U0+4}, {nsteps*1024}\ns_add_u32 s{ab+t}, s{ab+t}, s{U0+5}")
        FT = U0 + 11
        A(f"s_add_u32 s{FT}, s{U0+3}, s{U0+4}")
        S_RES = S_X1 if is4 else S_XIN
        CB = U0 + 12
        A(f"s_and_b32 s{CB}, s{S_M}, 7\ns_mul_i32 s{U0+5}, s{FT}, {TILE_X}\ns_add_u32 s{U0+5}, s{U0+5}, s{S_RES}\ns_mul_i32 s{U0+6}, s{CB}, 5")
        RES = 130
        rt = []
        for i in range(5):
            A(f"s_add_u32 s{U0+7}, s{U0+6}, {i}\ns_lshr_b32 s{U0+8}, s{U0+7}, 1\ns_lshl_b32 s{U0+8}, s{U0+8}, 10\ns_and_b32 s{U0+7}, s{U0+7}, 1\ns_lshl_b32 s{U0+7}, s{U0+7}, 3\ns_add_u32 s{T0+8+i}, s{U0+8}, s{U0+7}")
            A(f"s_add_u32 s{U0+7}, s{T0+8+i}, s{U0+5}")
            rt.append(A.vmem(f"buffer_load_dwordx2 {v(RES+2*i,2)}, v{V_L16}, s[{SRD_WS}:{SRD_WS+3}], s{U0+7} offen sc1"))
        stt = None; bt = []
        if is4:
            self.stats_lane_off(A, 200)
            stt = self.load_stats(A, FT, S_ST1, 140, 200)
            self.srd_set(A, SRD_X, P_B2, 640 * 2)
            A(f"v_lshrrev_b32 v201, 4, v{L}\nv_lshlrev_b32 v201, 3, v201\ns_mul_i32 s{U0+7}, s{CB}, 160")
            for i in range(5):
                bt.append(A.vmem(f"buffer_load_dwordx2 {v(144+2*i,2)}, v201, s[{SRD_X}:{SRD_X+3}], s{U0+7} offen offset:{32*i}"))
        A(f"s_mul_i32 s{U0+7}, s{U0+4}, 5120\nv_add_u32 v208, s{U0+7}, v{V_TR160}\nv_add_u32 v209, 65536, v208\nv_add_u32 v210, 131072, v208")
        def waddr(st, i):
            base = (b4_addr(st, 0) if is4 else b2_addr(2 * st)) + 32 * i
            res = []
            for h in range(2):
                a = base + h * 16 * 160
                res.append((208 + (a >> 16), a & 0xffff))
            return res
        for r in range(40): A(f"v_mov_b32 v{r}, 0")
        ticks = {6: "P4t1", 12: "P4t2", 14: "P4t3", 20: "P4t4"} if is4 else {5: "P2mid"}
        self.kloop(A, nsteps, 5, 2, acc, wreg, areg, waddr, ab, ac, depth, ticks)
        self.stamp(A, 5 if not is4 else 11)
        if is4: A.bar("P4kend")
        scr = P24_SCR_P4 if is4 else P24_SCR_P2
        A(f"s_mul_i32 s{U0+7}, s{w}, 5120\ns_add_u32 s{U0+7}, s{U0+7}, {scr}\nv_add_u32 v200, s{U0+7}, v{V_L16}")
        A(f"s_xor_b32 s{U0+8}, s{w}, 2\ns_mul_i32 s{U0+8}, s{U0+8}, 5120\ns_add_u32 s{U0+8}, s{U0+8}, {scr}\nv_add_u32 v201, s{U0+8}, v{V_L16}")
        k1, kd = self.lbl("RK"), self.lbl("RD")
        A(f"s_cmp_eq_u32 s{U0+4}, 1\ns_cbranch_scc1 {k1}")
        A("s_nop 7")
        for i in range(5): A(f"ds_write_b128 v200, {v(acc(i,1),4)} offset:{1024*i}")
        A(f"s_branch {kd}")
        A.label(k1)
        A("s_nop 7")
        for i in range(5):
            A(f"ds_write_b128 v200, {v(acc(i,0),4)} offset:{1024*i}")
        A("s_waitcnt lgkmcnt(0)")
        for i in range(5):
            for r in range(4): A(f"v_mov_b32 v{acc(i,0)+r}, v{acc(i,1)+r}")
        A.label(kd)
        A.waitall(vm=False)
        A.bar(name + "red")
        toks = [A.lds(f"ds_read_b128 {v(40+4*i,4)}, v201 offset:{1024*i}") for i in range(5)]
        for i in range(5):
            A.wait(toks[i])
            for r in range(0, 4, 2): A(f"v_pk_add_f32 {v(acc(i,0)+r,2)}, {v(acc(i,0)+r,2)}, {v(40+4*i+r,2)}")
        if is4:
            A.wait(stt)
            self.finish_stats(A, 140, 160, 161, 162)
            A(f"v_mul_f32 v162, v161, v161\nv_mul_f32 v162, v162, v141\nv_add_f32 v162, {hexf(EPS)}, v162\nv_rsq_f32 v162, v162\ns_nop 0\nv_mul_f32 v160, v161, v162")
            A.wait(bt)
        A.wait(rt)
        for i in range(5):
            a = acc(i, 0)
            A(f"v_lshlrev_b32 v60, 16, v{RES+2*i}\nv_and_b32 v61, 0xffff0000, v{RES+2*i}\nv_lshlrev_b32 v62, 16, v{RES+2*i+1}\nv_and_b32 v63, 0xffff0000, v{RES+2*i+1}")
            if is4:
                A(f"v_lshlrev_b32 v64, 16, v{144+2*i}\nv_and_b32 v65, 0xffff0000, v{144+2*i}\nv_lshlrev_b32 v66, 16, v{144+2*i+1}\nv_and_b32 v67, 0xffff0000, v{144+2*i+1}")
                for r in range(0, 4, 2):
                    A(f"v_pk_add_f32 {v(60+r,2)}, {v(60+r,2)}, {v(64+r,2)}")
                    A(f"v_pk_fma_f32 {v(a+r,2)}, {v(a+r,2)}, v[160:161], {v(60+r,2)} op_sel_hi:[1,0,1]")
            else:
                for r in range(0, 4, 2): A(f"v_pk_add_f32 {v(a+r,2)}, {v(a+r,2)}, {v(60+r,2)}")
            A(f"v_cvt_pk_bf16_f32 v{70+2*i}, v{a}, v{a+1}\nv_cvt_pk_bf16_f32 v{71+2*i}, v{a+2}, v{a+3}")
        A(f"v_mov_b32 v80, 0\nv_mov_b32 v81, 0\ns_mov_b32 s{U0+7}, 0x3f803f80")
        for d in range(10):
            A(f"v_dot2_f32_bf16 v80, v{70+d}, s{U0+7}, v80\nv_dot2_f32_bf16 v81, v{70+d}, v{70+d}, v81")
        A("s_nop 3")
        self.xgroup_reduce(A, 80, 82, "v_add_f32")
        self.xgroup_reduce(A, 81, 82, "v_add_f32")
        srd = f"s[{SRD_WS}:{SRD_WS+3}]"
        S_DST, S_STD = (S_XOUT, S_STOUT) if is4 else (S_X1, S_ST1)
        A(f"s_mul_i32 s{U0+5}, s{FT}, {TILE_X}\ns_add_u32 s{U0+5}, s{U0+5}, s{S_DST}")
        A(f"s_lshl_b32 s{U0+6}, s{FT}, 10\ns_lshl_b32 s{U0+7}, s{CB}, 7\ns_add_u32 s{U0+6}, s{U0+6}, s{U0+7}\ns_add_u32 s{U0+6}, s{U0+6}, s{S_STD}")
        A(f"v_and_b32 v83, 15, v{L}\nv_lshlrev_b32 v83, 3, v83")
        st = []
        for i in range(5):
            st.append(f"s_add_u32 s{U0+7}, s{T0+8+i}, s{U0+5}")
            st.append(f"buffer_store_dwordx2 {v(70+2*i,2)}, v{V_L16}, {srd}, s{U0+7} offen")
        st += ["s_mov_b64 exec, 0xffff", f"buffer_store_dwordx2 v[80:81], v83, {srd}, s{U0+6} offen", "s_mov_b64 exec, -1"]
        if is4:
            lo, ld = self.lbl("FO"), self.lbl("FD")
            A(f"s_cmp_eq_u32 s{S_LAYER}, 1\ns_cbranch_scc1 {lo}")
            self.handoff_stores(A, st)
            A(f"s_branch {ld}")
            A.label(lo)
            self.srd_set(A, SRD_X, P_OUT, 2048 * 640 * 2)
            A(f"v_and_b32 v84, 15, v{L}\nv_mul_u32_u24 v84, 1280, v84\nv_lshrrev_b32 v85, 4, v{L}\nv_lshlrev_b32 v85, 3, v85\nv_add_u32 v84, v84, v85")
            A(f"s_mul_i32 s{U0+5}, s{FT}, {16*1280}\ns_mul_i32 s{U0+6}, s{CB}, 160\ns_add_u32 s{U0+5}, s{U0+5}, s{U0+6}")
            for i in range(5):
                A(f"buffer_store_dwordx2 {v(70+2*i,2)}, v84, s[{SRD_X}:{SRD_X+3}], s{U0+5} offen offset:{32*i}")
            A.label(ld)
        else:
            self.handoff_stores(A, st)
        A.waitall()
        A.bar(name + "done")
        self.stamp(A, 6 if not is4 else 12)

    def dma_b3(self, A, hw, c0, c1):
        A(f"s_and_b32 s{U0+2}, s{S_M}, 15\ns_mul_i32 s{U0+2}, s{U0+2}, 27\ns_lshr_b32 s{U0+2}, s{U0+2}, 2\ns_lshl_b32 s{U0+2}, s{U0+2}, 5")
        self.dma_group(A, SRD_W1, V_D3, 7, c0, c1, b3_addr, lambda c: (c * 32 * 3456, U0 + 2), hw)
    def dma_b4(self, A, hw, p0, p1):
        A(f"s_and_b32 s{U0+2}, s{S_M}, 7\ns_mul_i32 s{U0+2}, s{U0+2}, 160")
        self.dma_group(A, SRD_W2, V_D4, 5, 2 * p0, 2 * p1, lambda q: b4_addr(q // 2, q % 2),
                       lambda q: (((q % 2) * 27 + q // 2) * 32 * 1280, U0 + 2), hw)

    def p2_H(self, A):
        hw = T0 + 16
        A(f"s_sub_u32 s{hw}, s{S_WAVE}, 4")
        self.dma_b3(A, hw, 0, 8)
        A.bar("P2go")
        A.bar("P2mid")
        self.dma_b3(A, hw, 8, 12)
        A.bar("P2red")
        self.dma_b3(A, hw, 15, 20)
        A.bar("P2done")
        self.dma_b3(A, hw, 12, 15)

    def p3_C(self, A):
        w = S_WAVE; L = V_LANE
        ACC, WB, AB = 0, 56, 112
        acc = lambda i, t: ACC + (i * 2 + t) * 4
        wreg = lambda b, i: WB + (b * 7 + i) * 4
        depth = 4
        areg = lambda sl, t: AB + (sl * 2 + t) * 4
        self.sync_phase(A, 0x800, 0x800, 13)
        A.bar("P3go")
        self.stamp(A, 7)
        TB = U0 + 10
        A(f"s_lshl_b32 s{TB}, s{S_J}, 4\ns_lshr_b32 s{U0+3}, s{S_M}, 4\ns_lshl_b32 s{U0+3}, s{U0+3}, 3\ns_add_u32 s{TB}, s{TB}, s{U0+3}\ns_lshl_b32 s{U0+3}, s{w}, 1\ns_add_u32 s{TB}, s{TB}, s{U0+3}")
        ab, ac = T0, T0 + 4
        for t in range(2):
            A(f"s_add_u32 s{U0+5}, s{TB}, {t}\ns_mul_i32 s{ab+t}, s{U0+5}, {TILE_X}\ns_add_u32 s{ab+t}, s{ab+t}, s{S_X1}")
        self.stats_lane_off(A, 200)
        stt = []
        for t in range(2):
            A(f"s_add_u32 s{U0+5}, s{TB}, {t}")
            stt.append(self.load_stats(A, U0 + 5, S_ST1, 144 + 4 * t, 200))
        AC = U0 + 11
        A(f"s_and_b32 s{AC}, s{S_M}, 15\ns_mul_i32 s{AC}, s{AC}, 27\ns_lshr_b32 s{AC}, s{AC}, 2")
        self.srd_set(A, SRD_X, P_B1, 1728 * 2)
        A(f"v_lshrrev_b32 v201, 4, v{L}\nv_lshlrev_b32 v201, 3, v201\ns_lshl_b32 s{U0+7}, s{AC}, 5")
        bt = [A.vmem(f"buffer_load_dwordx2 {v(152+2*i,2)}, v201, s[{SRD_X}:{SRD_X+3}], s{U0+7} offen offset:{32*i}") for i in range(7)]
        self.lds_base_regs(A, V_TR224, [208, 209, 210])
        def waddr(st, i):
            base = b3_addr(st) + 32 * i
            return [(208 + ((base + h * 16 * 224) >> 16), (base + h * 16 * 224) & 0xffff) for h in range(2)]
        for r in range(56): A(f"v_mov_b32 v{r}, 0")
        self.kloop(A, 20, 7, 2, acc, wreg, areg, waddr, ab, ac, depth, {8: "P3mid"})
        C1 = -2.0 * 0.7978845608028654 * 1.4426950408889634
        C2 = C1 * 0.044715
        for t in range(2):
            A.wait(stt[t])
            r = 144 + 4 * t
            self.finish_stats(A, r, 170 + 8 * t, 171 + 8 * t, 203)
            m_, r1 = 170 + 8 * t, 171 + 8 * t
            A(f"v_mul_f32 v203, v{r1}, v{r1}\nv_mul_f32 v203, v203, v{r+1}\nv_add_f32 v203, {hexf(EPS)}, v203\nv_rsq_f32 v203, v203\ns_nop 0\nv_mul_f32 v{r1}, v{r1}, v203")
            A(f"v_rcp_f32 v{172+8*t}, v{r1}")
            A(f"v_mul_f32 v{174+8*t}, {hexf(C1)}, v{r1}")
            A(f"v_mul_f32 v203, v{r1}, v{r1}\nv_mul_f32 v203, v203, v{r1}\nv_mul_f32 v{175+8*t}, {hexf(C2)}, v203")
        A.bar("P3kend")
        self.stamp(A, 8)
        A(f"v_lshrrev_b32 v200, 4, v{L}\nv_lshlrev_b32 v200, 4, v200\nv_add_u32 v200, {LDS_CS3}, v200")
        CS = 56
        toks = [A.lds(f"ds_read_b128 {v(CS+4*i,4)}, v200 offset:{64*i}") for i in range(7)]
        for p in range(1, 4):
            tk = [A.lds(f"ds_read_b128 {v(84+4*i,4)}, v200 offset:{448*p + 64*i}") for i in range(7)]
            A.wait(toks, tk)
            for r in range(0, 28, 2): A(f"v_pk_add_f32 {v(CS+r,2)}, {v(CS+r,2)}, {v(84+r,2)}")
        A.wait(bt)
        srd = f"s[{SRD_WS}:{SRD_WS+3}]"
        for i in range(7):
            b = 152 + 2 * i
            A(f"v_lshlrev_b32 v{112+4*i}, 16, v{b}\nv_and_b32 v{113+4*i}, 0xffff0000, v{b}\nv_lshlrev_b32 v{114+4*i}, 16, v{b+1}\nv_and_b32 v{115+4*i}, 0xffff0000, v{b+1}")
        OUT = 184
        for t in range(2):
            mp = 170 + 8 * t
            for i in range(7):
                a = acc(i, t)
                for r in range(0, 4, 2):
                    x = v(a + r, 2)
                    A(f"v_pk_fma_f32 {x}, {v(CS+4*i+r,2)}, {v(mp,2)}, {x} op_sel_hi:[1,0,1] neg_lo:[0,1,0] neg_hi:[0,1,0]")
                    A(f"v_pk_fma_f32 {x}, {v(112+4*i+r,2)}, {v(mp+2,2)}, {x} op_sel_hi:[1,0,1]")
                    A(f"v_pk_mul_f32 v[84:85], {x}, {x}")
                    A(f"v_pk_fma_f32 v[84:85], v[84:85], {v(mp+4,2)}, {v(mp+4,2)} op_sel:[0,1,0] op_sel_hi:[1,1,0]")
                    A(f"v_pk_mul_f32 v[84:85], v[84:85], {x}")
                    A(f"v_exp_f32 v84, v84\nv_exp_f32 v85, v85")
                    A(f"v_pk_add_f32 v[84:85], v[84:85], 1.0 op_sel_hi:[1,0]")
                    A(f"v_rcp_f32 v84, v84\nv_rcp_f32 v85, v85")
                    A(f"v_pk_mul_f32 {x}, {x}, v[84:85]")
                d = OUT + (t * 7 + i) * 2
                A(f"v_cvt_pk_bf16_f32 v{d}, v{a}, v{a+1}\nv_cvt_pk_bf16_f32 v{d+1}, v{a+2}, v{a+3}")
        st = []
        for t in range(2):
            A(f"s_add_u32 s{U0+5}, s{TB}, {t}\ns_mul_i32 s{T0+t}, s{U0+5}, {TILE_H}\ns_add_u32 s{T0+t}, s{T0+t}, s{S_HF}")
        for i in range(7):
            st.append(f"s_add_u32 s{U0+7}, s{AC}, {i}")
            st.append(f"s_lshr_b32 s{U0+8}, s{U0+7}, 1")
            st.append(f"s_lshl_b32 s{U0+8}, s{U0+8}, 10")
            st.append(f"s_and_b32 s{U0+7}, s{U0+7}, 1")
            st.append(f"s_lshl_b32 s{U0+7}, s{U0+7}, 3")
            st.append(f"s_add_u32 s{U0+7}, s{U0+7}, s{U0+8}")
            for t in range(2):
                st.append(f"s_add_u32 s{U0+8}, s{U0+7}, s{T0+t}")
                st.append(f"buffer_store_dwordx2 {v(OUT+(t*7+i)*2,2)}, v{V_L16}, {srd}, s{U0+8} offen")
        self.handoff_stores(A, st)
        A.waitall()
        A.bar("P3done")
        self.stamp(A, 9)

    def p3_H(self, A):
        hw = T0 + 16
        L = V_LANE
        A.waitall(vm=True, lg=False)
        A.bar("P3go")
        for r in range(4): A(f"v_mov_b32 v{60+r}, 0x3f803f80")
        for r in range(28): A(f"v_mov_b32 v{r}, 0")
        A(f"s_mul_i32 s{U0}, s{hw}, 7168\nv_add_u32 v208, s{U0}, v{V_TR224}\nv_add_u32 v209, 65536, v208\nv_add_u32 v210, 131072, v208")
        def cs_chunk(base):
            toks = []
            for i in range(7):
                tk = []
                for h in range(2):
                    a = base + 32 * i + h * 16 * 224
                    tk.append(A.lds(f"ds_read_b64_tr_b16 {v(32+i*4+2*h,2)}, v{208 + (a >> 16)} offset:{a & 0xffff}"))
                toks.append(tk)
            for i in range(7):
                A.wait(toks[i])
                A(f"v_mfma_f32_16x16x32_bf16 {v(i*4,4)}, {v(32+i*4,4)}, v[60:63], {v(i*4,4)}")
        for n in range(2): cs_chunk(102400 + 7168 * 4 * n)
        A.waitall(vm=False)
        A.bar("P3mid")
        self.dma_b4(A, hw, 0, 7)
        for n in range(3): cs_chunk(7168 * 4 * n)
        A(f"v_lshrrev_b32 v200, 4, v{L}\nv_lshlrev_b32 v200, 4, v200\ns_mul_i32 s{U0}, s{hw}, 448\ns_add_u32 s{U0}, s{U0}, {LDS_CS3}\nv_add_u32 v200, s{U0}, v200")
        A(f"v_and_b32 v201, 15, v{L}\nv_cmp_eq_u32 vcc, 0, v201\ns_and_saveexec_b64 s[{U0+2}:{U0+3}], vcc")
        for i in range(7):
            A.lds(f"ds_write_b128 v200, {v(i*4,4)} offset:{i*64}")
        A(f"s_mov_b64 exec, s[{U0+2}:{U0+3}]")
        A.waitall(vm=False)
        A.bar("P3kend")
        self.dma_b4(A, hw, 7, 15)
        A.bar("P3done")

    def p4_H(self, A):
        hw = T0 + 16
        A.waitall(vm=True, lg=False)
        A.bar("P4go")
        A.bar("P4t1")
        self.dma_b4(A, hw, 15, 21)
        A.bar("P4t2")
        self.dma_b4(A, hw, 21, 27)
        A("s_waitcnt vmcnt(15)")
        A.bar("P4t3")
        A("s_waitcnt vmcnt(0)")
        A.bar("P4t4")
        A.bar("P4kend")
        sk = self.lbl("NB1")
        A(f"s_cmp_eq_u32 s{S_LAYER}, 1\ns_cbranch_scc1 {sk}")
        self.dma_b1(A, hw)
        A.label(sk)
        A.bar("P4red")
        A.bar("P4done")

    def build(self):
        P = Asm("pro"); C = Asm("C"); H = Asm("H"); T = Asm("att")
        self.prologue(P)
        P(f"s_cmp_ge_u32 s{S_WAVE}, 4\ns_cbranch_scc1 L_H0")
        stop = self.stop
        def endif(A, name):
            if stop == name:
                A("s_waitcnt vmcnt(0) lgkmcnt(0)\ns_endpgm"); return True
            return False
        self.phase0_C(C); self.phase0_H(H)
        done = endif(C, "p0"); endif(H, "p0")
        C.label("L_CLOOP"); H.label("L_HLOOP")
        if not done:
            self.p1_C(C); self.p1_H(H)
            C("s_branch L_ATT"); H("s_branch L_ATT")
            self.attention(T)
            T(f"s_cmp_ge_u32 s{S_WAVE}, 4\ns_cbranch_scc1 L_HATT\ns_branch L_CATT")
            C.label("L_CATT"); H.label("L_HATT")
            done = endif(C, "att"); endif(H, "att")
        if not done:
            self.p24_C(C, 2); self.p2_H(H)
            done = endif(C, "p2"); endif(H, "p2")
        if not done:
            self.p3_C(C); self.p3_H(H)
            done = endif(C, "p3"); endif(H, "p3")
        if not done:
            self.p24_C(C, 4); self.p4_H(H)
            done = endif(C, "p4"); endif(H, "p4")
        if not done:
            lend = self.lbl("CE")
            C(f"s_cmp_eq_u32 s{S_LAYER}, 1\ns_cbranch_scc1 {lend}")
            self.sync_phase(C, 0x2000, None, 0)
            C(f"s_mov_b32 s{S_LAYER}, 1"); self.layer_bases(C)
            C("s_branch L_CLOOP")
            C.label(lend)
            e2 = self.lbl("EE")
            C(f"s_cmp_lg_u32 s{S_WAVE}, 0\ns_cbranch_scc1 {e2}\ns_lshl_b32 s{T0}, s{S_J}, 5\ns_add_u32 s{T0}, s{T0}, s{S_M}\ns_cmp_lg_u32 s{T0}, 255\ns_cbranch_scc1 {e2}")
            self.srd_set(C, SRD_X, P_DBG, 256)
            lo = self.lbl("EP")
            C(f"s_mov_b64 exec, 1\nv_mov_b32 v2, 32\ns_mov_b32 s{T0+1}, 0")
            C.label(lo)
            C(f"buffer_load_dword v3, v2, s[{SRD_X}:{SRD_X+3}], 0 offen sc1\ns_waitcnt vmcnt(0)\nv_readfirstlane_b32 s{T0}, v3\ns_add_u32 s{T0+1}, s{T0+1}, 1")
            C(f"s_cmp_ge_u32 s{T0}, 256\ns_cbranch_scc1 {lo}_d\ns_cmp_lt_u32 s{T0+1}, 0x100000\ns_cbranch_scc1 {lo}")
            C.label(lo + "_d")
            C(f"v_mov_b32 v3, s{S_TAG}\nv_mov_b32 v2, 0\ns_mov_b32 s{T0}, {WS_EPOCH}\nbuffer_store_dword v3, v2, s[{SRD_WS}:{SRD_WS+3}], s{T0} offen sc1\ns_waitcnt vmcnt(0)")
            C.label(e2)
            C("s_endpgm")
            lend = self.lbl("HEnd")
            H(f"s_cmp_eq_u32 s{S_LAYER}, 1\ns_cbranch_scc1 {lend}")
            H(f"s_mov_b32 s{S_LAYER}, 1"); self.layer_bases(H)
            H("s_branch L_HLOOP")
            H.label(lend)
            H("s_waitcnt vmcnt(0)\ns_endpgm")
        cb = [b for b in C.bars]; hb = [b for b in H.bars]
        assert cb == hb, (cb, hb)
        lines = P.L + C.L + ["L_H0:"] + H.L + (["L_ATT:"] + T.L if T.L else []) + ["L_EXIT:", "  s_endpgm"]
        fixed, _ = fix_hazards(lines)
        hdr = open("cdna_kernels/" + KNAME[:-7] + ".s.ref").read().split("\n")
        hd = [l for l in hdr if l.startswith(";") and "@launch" not in l and "Override" not in l and "grid=ceil" not in l]
        hd = hd[:13]
        out = hd + [f"; @launch grid=(256,1,1) block=(512,1,1) lds={LDS_TOTAL}",
                    '.amdgcn_target "amdgcn-amd-amdhsa--gfx950"', ".text", f".globl {KNAME}", ".p2align 8", f".type {KNAME},@function", f"{KNAME}:"]
        out += fixed
        out += ['.section .rodata,"a"', ".p2align 6", f".amdhsa_kernel {KNAME}", "  .amdhsa_next_free_vgpr 256", "  .amdhsa_next_free_sgpr 102",
                "  .amdhsa_accum_offset 256", "  .amdhsa_group_segment_fixed_size 0", "  .amdhsa_kernarg_size 88", "  .amdhsa_user_sgpr_count 2",
                "  .amdhsa_user_sgpr_kernarg_segment_ptr 1", "  .amdhsa_system_sgpr_workgroup_id_x 1", ".end_amdhsa_kernel", ""]
        return "\n".join(out)

if __name__ == "__main__":
    import argparse
    ap = argparse.ArgumentParser()
    ap.add_argument("--stop", default=None); ap.add_argument("--stamps", action="store_true"); ap.add_argument("--slow", action="store_true")
    ap.add_argument("-o", default="k.s")
    a = ap.parse_args()
    g = Gen(stop=a.stop, stamps=a.stamps, force_slow=a.slow)
    open(a.o, "w").write(g.build())
    print("written", a.o)
```
